```python
import torch

def _softmax(x, axis=-1):
    return torch.softmax(x, dim=axis)
def _gelu(x):
    return torch.nn.functional.gelu(x, approximate="tanh")
def _silu(x):
    return torch.nn.functional.silu(x)
def _sigmoid(x):
    return torch.sigmoid(x)
def _layernorm(x, axis=-1, eps=1e-5):
    m = x.mean(dim=axis, keepdim=True)
    v = x.var(dim=axis, keepdim=True, unbiased=False)
    return (x - m) / torch.sqrt(v + eps)
def _scatter_add(tgt, idx, src, axis=0):
    return tgt.clone().index_add_(axis, idx, src)
def _segment_sum(src, seg, n):
    out = torch.zeros((n,) + src.shape[1:], dtype=src.dtype)
    return out.index_add_(0, seg, src)
def _pad(x, pw):
    flat = tuple(v for pair in reversed(pw) for v in pair)
    return torch.nn.functional.pad(x, flat)

kernel_name = 'gated_mix__mha_block__mixer_s_mlp__prompt'

def setup_inputs():

    _w = (lambda a: (lambda t: t.to(torch.bfloat16) if t.is_floating_point() else t)(torch.as_tensor(a)))
    def _A_setup():
        B, S, D, H = 1, 2048, 576, 32
        return {
            "x": _w((lambda *s: torch.randn(*s, dtype=torch.bfloat16) * 0.05)(B, S, D)),
            "wqkv": _w((lambda *s: torch.randn(*s, dtype=torch.bfloat16) * 1.6)(D, 3 * D)),
            "wo": _w((lambda *s: torch.randn(*s, dtype=torch.bfloat16) * 0.1)(D, D)),
        }
    _A_in = _A_setup()

    def _B_setup():
        B, S, D, F = 1, 2048, 576, 4608
        return {
            "x":  _w((lambda *s: torch.randn(*s, dtype=torch.bfloat16) * 0.05)(B, S, D)),
            "w1": _w((lambda *s: torch.randn(*s, dtype=torch.bfloat16) * 3.2)(D, D) * (D ** -0.5)),
            "w2": _w((lambda *s: torch.randn(*s, dtype=torch.bfloat16) * 3.2)(D, D) * (D ** -0.5)),
            "w3": _w((lambda *s: torch.randn(*s, dtype=torch.bfloat16) * 3.2)(D, F) * (D ** -0.5)),
            "w4": _w((lambda *s: torch.randn(*s, dtype=torch.bfloat16) * 3.2)(F, D) * (F ** -0.5)),
        }
    _B_in = _B_setup()

    return {
        "A_x": _A_in["x"],
        "A_wqkv": _A_in["wqkv"],
        "A_wo": _A_in["wo"],
        "B_x": _B_in["x"],
        "B_w1": _B_in["w1"],
        "B_w2": _B_in["w2"],
        "B_w3": _B_in["w3"],
        "B_w4": _B_in["w4"],
        "gate_w": _w((lambda *s: torch.randn(*s, dtype=torch.bfloat16) * 0.05)(576) * 16.0),
    }

def reference(A_x, A_wqkv, A_wo, B_x, B_w1, B_w2, B_w3, B_w4, gate_w):
    def _A_ref(x, wqkv, wo):
        B, S, D = x.shape
        H = 32
        Dh = D // H
        qkv = (lambda x, *d: x.permute(*d))((x @ wqkv).reshape(B, S, 3, H, Dh), 2, 0, 3, 1, 4)
        q, k, v = qkv[0], qkv[1], qkv[2]
        scores = torch.einsum("bhqd,bhkd->bhqk", q, k) * (Dh ** -0.5)
        p = _softmax(scores, axis=-1)
        o = torch.einsum("bhqk,bhkd->bhqd", p, v)
        return (lambda x, *d: x.permute(*d))(o, 0, 2, 1, 3).reshape(B, S, D) @ wo

    def _B_ref(x, w1, w2, w3, w4):
        B, S, D = x.shape
        h = _gelu(_layernorm(x, axis=-1) @ w1)
        c = D // 4
        g0 = _pad(h[:, :, 0*c:1*c], ((0, 0), (1, 0), (0, 0)))[:, :S, :]
        g1 = _pad(h[:, :, 1*c:2*c], ((0, 0), (0, 1), (0, 0)))[:, 1:, :]
        g2 = _pad(h[:, :, 2*c:3*c], ((0, 0), (2, 0), (0, 0)))[:, :S, :]
        g3 = _pad(h[:, :, 3*c:   ], ((0, 0), (0, 2), (0, 0)))[:, 2:, :]
        hs = torch.concatenate([g0, g1, g2, g3], axis=-1) @ w2
        x1 = x + hs
        h2 = _gelu(_layernorm(x1, axis=-1) @ w3) @ w4
        return x1 + h2

    x = A_x
    g = _sigmoid((x * gate_w).sum(-1, keepdims=True))
    a = _A_ref(x, A_wqkv, A_wo)
    b = _B_ref(x, B_w1, B_w2, B_w3, B_w4)
    return g * a + (1 - g) * b
```

```python
import re

TRANS = ("v_exp_f32","v_log_f32","v_rcp_f32","v_rsq_f32","v_sqrt_f32","v_sin_f32","v_cos_f32","v_exp_f16","v_rcp_iflag_f32")
RMW_VALU = ("v_fmac_f32","v_dot2c_f32_bf16","v_pk_fmac_f16","v_fmac_f32_e32","v_dot2c_f32_bf16_e32", "v_writelane_b32", "v_mov_b32_dpp", "v_add_f32_dpp", "v_max_f32_dpp")

def regs_of(tok):
    tok = tok.strip()
    neg = tok.lstrip("-")
    m = re.fullmatch(r"abs\((.*)\)", neg) or re.fullmatch(r"\|(.*)\|", neg)
    if m: neg = m.group(1)
    m = re.fullmatch(r"([vas])(\d+)", neg)
    if m: return [(m.group(1), int(m.group(2)))]
    m = re.fullmatch(r"([vas])\[(\d+):(\d+)\]", neg)
    if m: return [(m.group(1), i) for i in range(int(m.group(2)), int(m.group(3))+1)]
    if neg == "vcc": return [("x","vcc")]
    if neg in ("vcc_lo","vcc_hi"): return [("x","vcc")]
    if neg in ("exec","exec_lo","exec_hi"): return [("x","exec")]
    if neg == "m0": return [("x","m0")]
    if neg == "scc": return [("x","scc")]
    return []

def mfma_passes(op):
    if "32x32x16" in op or "32x32x8" in op: return 8
    if "16x16x32" in op or "16x16x16" in op: return 4
    if "32x32x4" in op: return 16
    if "4x4x4" in op: return 2
    raise ValueError(op)

class Ins:
    __slots__ = ("op","ops","mods","cls","rd","wr","text","pre","comment","srcC","srcAB","passes","wide_store","nowait", "tag")
    def __init__(self, op, ops, mods="", comment=""):
        self.op, self.ops, self.mods, self.comment = op, list(ops), mods, comment
        self.pre = {}
        self.srcC = []; self.srcAB = []; self.passes = 0; self.wide_store = []; self.nowait = False; self.tag=None
        self.classify()
    def classify(self):
        op, o = self.op, [str(x) for x in self.ops]
        R = lambda toks: [r for t in toks for r in regs_of(t)]
        rd, wr = [], []
        if op == "label" or op == "raw":
            self.cls = "none"
        elif op.startswith("v_mfma") or op.startswith("v_smfmac"):
            self.cls = "mfma"; wr = R(o[:1]); self.srcAB = R(o[1:3]); self.srcC = R(o[3:4]); rd = self.srcAB + self.srcC
            self.passes = mfma_passes(op)
        elif op.startswith("v_"):
            self.cls = "trans" if op.replace("_e32","").replace("_e64","") in TRANS else "valu"
            if op.startswith("v_cmp"):
                wr = R(o[:1]); rd = R(o[1:])
                if op.startswith("v_cmpx"): wr.append(("x","exec"))
            elif op.startswith("v_permlane") and "swap" in op:
                wr = R(o[:2]); rd = R(o[:2])
            elif op.startswith(("v_add_co","v_sub_co","v_addc_co","v_subb_co","v_subrev_co","v_mad_u64_u32","v_div_scale")):
                wr = R(o[:2]); rd = R(o[2:])
            elif op == "v_nop":
                pass
            else:
                wr = R(o[:1]); rd = R(o[1:])
                if op in RMW_VALU or "dpp" in op or "sdwa" in op: rd += wr
            rd.append(("x","exec"))
        elif op.startswith("ds_"):
            self.cls = "ds"
            if op.startswith(("ds_read","ds_bpermute","ds_permute","ds_swizzle")) or "_rtn" in op:
                wr = R(o[:1]); rd = R(o[1:])
            else:
                rd = R(o)
            rd.append(("x","exec"))
        elif op.startswith(("buffer_","global_")):
            self.cls = "vmem"
            islds = " lds" in (" "+self.mods) or "load_lds" in op
            if op in ("buffer_wbl2","buffer_inv"):
                pass
            elif "load" in op and not islds:
                wr = R(o[:1]); rd = R(o[1:])
            elif "atomic" in op and "sc0" in self.mods:
                rd = R(o); wr = R(o[:1])
            else:
                rd = R(o)
                if islds: rd.append(("x","m0"))
                if "store" in op and op.endswith(("x3","x4")):
                    self.wide_store = R(o[:1]) if op.startswith("buffer_") else R(o[1:2])
            rd.append(("x","exec"))
        elif op.startswith(("s_load","s_buffer_load","s_memtime","s_memrealtime", "s_atomic")):
            self.cls = "smem"; wr = R(o[:1]); rd = R(o[1:])
            if op.startswith("s_atomic"): rd += wr
        elif op.startswith("s_"):
            self.cls = "salu"
            if op.startswith(("s_cmp","s_bitcmp")):
                rd = R(o); wr = [("x","scc")]
            elif op.startswith(("s_waitcnt","s_barrier","s_nop","s_setprio","s_endpgm","s_branch","s_sleep","s_sethalt", "s_setreg")):
                rd = R(o)
            elif op.startswith("s_cbranch"):
                rd = [("x", "scc" if "scc" in op else "vcc" if "vcc" in op else "exec")]
            else:
                wr = R(o[:1]); rd = R(o[1:])
                if "saveexec" in op: wr.append(("x","exec")); rd.append(("x","exec"))
                if op.startswith(("s_addk","s_mulk")): rd += wr
                if op.startswith(("s_addc","s_subb","s_cselect","s_cmov")): rd.append(("x","scc"))
                if not op.startswith(("s_mov","s_mul_i32","s_mul_hi","s_cselect","s_movk","s_getreg","s_mulk", "s_getpc")): wr.append(("x","scc"))
        else:
            raise ValueError("unknown op "+op)
        self.rd, self.wr = rd, wr
    def render(self):
        if self.op == "label": return f"{self.ops[0]}:"
        if self.op == "raw": return self.ops[0]
        s = "  " + self.op
        if self.ops: s += " " + ", ".join(str(x) for x in self.ops)
        if self.mods: s += " " + self.mods
        if self.comment: s += "  ; " + self.comment
        return s
    def states(self):
        if self.cls == "none": return 0
        if self.op == "s_nop": return int(self.ops[0]) + 1
        return 1

class Prog:
    def __init__(self):
        self.ins = []
        self.loops = []
        self._lstack = []
    def __getattr__(self, op):
        if op.startswith(("v_","s_","ds_","buffer_","global_")):
            def f(*ops, m="", c=""):
                i = Ins(op, ops, m, c); self.ins.append(i); return i
            return f
        raise AttributeError(op)
    def add(self, i): self.ins.append(i); return i
    def extend(self, lst):
        for i in lst: self.ins.append(i)
    def label(self, name): self.ins.append(Ins("label", [name]))
    def raw(self, text): self.ins.append(Ins("raw", [text]))
    def loop_begin(self, name):
        self.label(name); self._lstack.append(len(self.ins))
    def loop_end(self):
        s = self._lstack.pop(); self.loops.append((s, len(self.ins)))
    def csel(self, dst, x, y):
        lit = lambda t: isinstance(t, int) and not (-16 <= t <= 64)
        if lit(x) and lit(y) and x != y:
            self.s_mov_b32(dst, y); self.s_cselect_b32(dst, x, dst)
        else: self.s_cselect_b32(dst, x, y)
    def wait(self, vm=None, lgkm=None):
        t = []
        if vm is not None: t.append(f"vmcnt({vm})")
        if lgkm is not None: t.append(f"lgkmcnt({lgkm})")
        i = Ins("s_waitcnt", [" ".join(t)]); self.ins.append(i); return i

    def trace(self):
        def expand(lo, hi, loops):
            out = []; i = lo
            inner = sorted([l for l in loops if lo <= l[0] and l[1] <= hi and (l[0], l[1]) != (lo, hi)], key=lambda l: (l[0], -l[1]))
            while i < hi:
                top = next((l for l in inner if l[0] == i), None)
                if top:
                    b = expand(top[0], top[1], [l for l in inner if l != top])
                    out += b + b; i = top[1]
                else:
                    out.append(self.ins[i]); i += 1
            return out
        return expand(0, len(self.ins), self.loops)

    def auto_wait(self):
        for _ in range(3):
            changed = False
            vm = []
            lg = []
            for ins in self.trace():
                if ins.cls == "none": continue
                if ins.op == "s_waitcnt":
                    t = ins.ops[0]
                    m = re.search(r"vmcnt\((\d+)\)", t)
                    if m: n = int(m.group(1)); vm = vm[len(vm)-n:] if n < len(vm) else vm; vm = vm if n else []
                    m = re.search(r"lgkmcnt\((\d+)\)", t)
                    if m:
                        n = int(m.group(1))
                        if n == 0: lg = []
                        elif not any(k == "smem" for k, _ in lg): lg = lg[len(lg)-n:] if n < len(lg) else lg
                    continue
                touched = set(ins.rd) | set(ins.wr)
                need = None
                for idx in range(len(vm)-1, -1, -1):
                    if vm[idx] & touched:
                        need = len(vm)-1-idx; break
                if need is not None and not ins.nowait:
                    if need > 63: need = 63
                    if ins.pre.get("vm", 99) > need: ins.pre["vm"] = need; changed = True
                if "vm" in ins.pre:
                    n = ins.pre["vm"]; vm = vm[len(vm)-n:] if 0 < n < len(vm) else ([] if n == 0 else vm)
                need = None
                for idx in range(len(lg)-1, -1, -1):
                    if lg[idx][1] & touched:
                        need = len(lg)-1-idx; break
                if need is not None and not ins.nowait:
                    if any(k == "smem" for k, _ in lg): need = 0
                    if need > 15: need = 15
                    if ins.pre.get("lgkm", 99) > need: ins.pre["lgkm"] = need; changed = True
                if "lgkm" in ins.pre:
                    n = ins.pre["lgkm"]
                    if n == 0: lg = []
                    elif not any(k == "smem" for k, _ in lg): lg = lg[len(lg)-n:] if n < len(lg) else lg
                if ins.cls == "vmem": vm.append(set(r for r in ins.wr))
                elif ins.cls == "ds": lg.append(("ds", set(ins.wr)))
                elif ins.cls == "smem": lg.append(("smem", set(ins.wr)))
            if not changed: break

    def hazards(self, fix=True):
        problems = []
        for it in range(6):
            changed = False
            hist = []
            pos = 0
            for ins in self.trace():
                if ins.cls == "none": continue
                p0 = pos + (1 if ("vm" in ins.pre or "lgkm" in ins.pre) else 0) + ins.pre.get("nop", 0)
                need = 0; why = None
                rd, wr = set(ins.rd), set(ins.wr)
                isv = ins.cls in ("valu","trans")
                for prev, pp in reversed(hist):
                    dist = p0 - pp - prev.states()
                    if dist >= 20: break
                    req = 0
                    pw = set(prev.wr)
                    pv = prev.cls in ("valu","trans")
                    if pv:
                        vw = {r for r in pw if r[0] in "va"}
                        sw = {r for r in pw if r[0] == "s" or r == ("x","vcc")}
                        if ins.cls == "mfma" and vw & rd: req = max(req, 2)
                        if ins.cls == "mfma" and ("x","exec") in pw: req = max(req, 4)
                        if prev.cls == "trans" and ins.cls == "valu" and vw & rd: req = max(req, 1)
                        if prev.cls == "trans" and ins.cls in ("mfma",) and vw & rd: req = max(req, 2)
                        if ins.op.startswith(("v_readlane","v_readfirstlane")) and vw & rd: req = max(req, 1)
                        if ins.op.startswith("v_permlane") and vw & rd: req = max(req, 2)
                        if ("dpp" in ins.op or "row_" in ins.mods or "quad_perm" in ins.mods) and vw & rd: req = max(req, 2)
                        if ins.cls == "vmem" and sw & rd: req = max(req, 5)
                        if isv and sw & rd: req = max(req, 2)
                        if ins.op.startswith(("v_readlane","v_writelane")) and sw & rd: req = max(req, 4)
                        if ("sdwa" in prev.op or "op_sel" in prev.mods) and not prev.op.startswith("v_pk") and isv and vw & (rd|wr): req = max(req, 1)
                        if ("x","exec") in pw and isv: req = max(req, 5)
                        if prev.op.startswith("v_dot") and vw & (rd | wr) and not (ins.op == prev.op and not (vw & set(r for t in ins.ops[1:] for r in regs_of(str(t))))): req = max(req, 3)
                    if prev.cls == "mfma":
                        P = prev.passes
                        t_use = {2:5, 4:8, 8:12, 16:20}[P]
                        if ins.cls == "mfma":
                            if pw & set(ins.srcAB): req = max(req, t_use)
                            if pw & set(ins.srcC):
                                if set(ins.srcC) == pw and ins.passes == P: req = max(req, 2 if P == 2 else 0)
                                else: req = max(req, {2:4, 4:6, 8:10, 16:18}[P])
                            elif pw & wr: req = max(req, {2:4, 4:6, 8:10, 16:18}[P])
                        elif (isv or ins.cls in ("vmem","ds")) and pw & (rd | wr): req = max(req, t_use)
                        if isv and set(prev.srcC) & wr: req = max(req, {2:1, 4:3, 8:7, 16:15}[P])
                        if ins.cls in ("ds","vmem") and set(prev.srcC) & wr: req = max(req, {2:1, 4:3, 8:7, 16:15}[P])
                    if prev.cls == "salu" and ("x","m0") in pw and ("x","m0") in rd and ins.cls in ("vmem","ds"): req = max(req, 1)
                    if prev.wide_store and set(prev.wide_store) & wr: req = max(req, 2 if isv else 1)
                    if req - dist > need: need = req - dist; why = (prev.render(), ins.render(), req, dist)
                if need > 0:
                    if fix:
                        ins.pre["nop"] = ins.pre.get("nop", 0) + need; changed = True; p0 += need
                        problems.append(why)
                    else: problems.append(why)
                hist.append((ins, p0)); pos = p0 + ins.states()
                if len(hist) > 40: hist.pop(0)
            if not changed: break
        return problems

    def finalize(self, verbose=False):
        self.auto_wait()
        pr = self.hazards(fix=True)
        if verbose:
            for p in pr: print("padded:", p)
        out = []
        for ins in self.ins:
            t = []
            if "vm" in ins.pre: t.append(f"vmcnt({ins.pre['vm']})")
            if "lgkm" in ins.pre: t.append(f"lgkmcnt({ins.pre['lgkm']})")
            if t: out.append("  s_waitcnt " + " ".join(t))
            n = ins.pre.get("nop", 0)
            while n > 0:
                k = min(n, 16); out.append(f"  s_nop {k-1}"); n -= k
            out.append(ins.render())
        return "\n".join(out) + "\n"

def v(i, n=1): return f"v{i}" if n == 1 else f"v[{i}:{i+n-1}]"
def a(i, n=1): return f"a{i}" if n == 1 else f"a[{i}:{i+n-1}]"
def s(i, n=1): return f"s{i}" if n == 1 else f"s[{i}:{i+n-1}]"

def kernel_text(name, body, nvgpr=256, accum=256, nsgpr=102):
    return f""".text
.globl {name}
.p2align 8
.type {name},@function
{name}:
{body}
.section .rodata,"a"
.p2align 6
.amdhsa_kernel {name}
  .amdhsa_next_free_vgpr {nvgpr}
  .amdhsa_next_free_sgpr {nsgpr}
  .amdhsa_accum_offset {accum}
  .amdhsa_group_segment_fixed_size 0
  .amdhsa_kernarg_size 96
  .amdhsa_user_sgpr_count 2
  .amdhsa_user_sgpr_kernarg_segment_ptr 1
  .amdhsa_system_sgpr_workgroup_id_x 1
  .amdhsa_float_denorm_mode_32 3
  .amdhsa_float_denorm_mode_16_64 3
.end_amdhsa_kernel
"""
```

```python
from asmb import *
from layout import *
from mlp import f2u

def gen_attn(P, s_hd, s_qb, sb=40, opts=None):
    o = dict(stamp=False, UN=8, qk8=True, onewait=True, rdpos='mfma', force_redo=False, DL=1, mpos=(0,4,8,12))
    o.update(opts or {})
    UN = o["UN"]
    sWS, sKV, sO = sb, sb+4, sb+8
    sWV, sT0, sT1, sCNT, sREDO, sMC = sb+12, sb+13, sb+14, sb+15, sb+16, sb+17
    sPtr = sb+18
    sEX = sb+24
    vKA, vVA, vEA, vLN = 1, 2, 3, 4
    vT = list(range(5, 16))
    vQ0 = [16+8*c for c in range(4)]; vQ1 = [20+8*c for c in range(4)]
    vK0 = [48, 56]; vK1 = [52, 60]
    vV = [64, 72]
    vP = [80, 88]
    vS = [96, 112]
    vO = [128+16*c for c in range(4)]
    vM = [192+c for c in range(4)]
    MF = "v_mfma_f32_32x32x16_bf16"
    fa = a if o.get("agpr") else v

    P.s_load_dwordx2(s(sPtr,2), "s[0:1]", KA_WS)
    P.v_lshrrev_b32(v(5), 6, "v0")
    P.v_and_b32(v(vLN), 63, "v0")
    P.v_readfirstlane_b32(s(sWV), v(5))
    P.v_lshlrev_b32(v(vKA), 4, v(vLN))
    P.v_and_b32(v(6), 31, v(vLN))
    P.v_lshlrev_b32(v(vEA), 2, v(6))
    P.v_min_u32(v(7), 18, v(6))
    P.v_lshrrev_b32(v(8), 5, v(vLN))
    P.v_mul_u32_u24(v(8), 304, v(8))
    P.v_lshl_add_u32(v(vVA), v(7), 4, v(8))
    P.s_mov_b32(s(sWS), s(sPtr)); P.s_mov_b32(s(sWS+1), s(sPtr+1)); P.s_mov_b32(s(sWS+2), WS_QE + 32*2048*4); P.s_mov_b32(s(sWS+3), 0x20000)
    P.s_mul_i32(s(sT0), s_hd, KVHEAD); P.s_add_u32(s(sT0), s(sT0), WS_KV)
    P.s_add_u32(s(sKV), s(sPtr), s(sT0)); P.s_addc_u32(s(sKV+1), s(sPtr+1), 0)
    P.s_mov_b32(s(sKV+2), KVHEAD); P.s_mov_b32(s(sKV+3), 0x20000)
    P.s_add_u32(s(sO), s(sPtr), WS_O); P.s_addc_u32(s(sO+1), s(sPtr+1), 0)
    P.s_mov_b32(s(sO+2), ACT_BYTES); P.s_mov_b32(s(sO+3), 0x20000)
    P.s_lshl_b32(s(sT0), s_qb, 4); P.s_lshl_b32(s(sT1), s(sWV), 2); P.s_add_u32(s(sT0), s(sT0), s(sT1))
    P.s_lshl_b32(s(sT1), s_hd, 6); P.s_add_u32(s(sT1), s(sT1), s(sT0))
    P.s_lshl_b32(s(sMC), s(sT1), 10)
    for c in range(4):
        P.buffer_load_dwordx4(v(vQ0[c],4), v(vKA), s(sWS,4), s(sMC), m=f"offen offset:{c*1024}")
    P.s_lshl_b32(s(sMC), s(sT1), 7); P.s_add_u32(s(sMC), s(sMC), WS_QE)
    for c in range(4):
        P.buffer_load_dword(v(vQ1[c]), v(vEA), s(sWS,4), s(sMC), m=f"offen offset:{c*128}")
    P.s_lshl_b32(s(sT1), s(sWV), 10)
    for i in range(37):
        P.s_add_u32("m0", s(sT1), i*4096)
        P.s_add_u32(s(sMC), s(sT1), i*4096)
        P.buffer_load_dwordx4(v(vKA), s(sKV,4), s(sMC), m="offen lds")
    vOA = 196
    sOM, sOE = sb+26, sb+27
    P.v_mov_b32(v(vOA), v(vKA))
    P.s_mul_i32(s(sT0), s(sT0), 36864)
    P.s_lshl_b32(s(sT1), s_hd, 10); P.s_add_u32(s(sOM), s(sT0), s(sT1))
    P.s_lshr_b32(s(sT1), s_hd, 2); P.s_lshl_b32(s(sT1), s(sT1), 9); P.s_add_u32(s(sOE), s(sT0), s(sT1))
    P.s_and_b32(s(sT1), s_hd, 3); P.s_lshl_b32(s(sT1), s(sT1), 2); P.s_add_u32(s(sOE), s(sOE), s(sT1)); P.s_add_u32(s(sOE), s(sOE), 32768)
    P.v_add_u32(v(vVA), 1024, v(vVA))
    P.v_add_u32(v(vEA), 2240, v(vEA))
    for b in range(2):
        P.v_mov_b32(v(vK1[b]+1), 0x3f803f80); P.v_mov_b32(v(vK1[b]+2), 0x00003f80); P.v_mov_b32(v(vK1[b]+3), 0)
    P.v_cmp_gt_u32(s(sEX,2), 32, v(vLN))
    for c in range(4):
        P.v_mov_b32(v(vQ1[c]+3), 0)
    P.s_mov_b32(s(sREDO), 0)
    P.s_mov_b32(s(sMC), 1)
    P.wait(vm=31)
    for c in range(4):
        P.v_cndmask_b32(v(vQ1[c]), 0, v(vQ1[c]), s(sEX,2))
    P.s_barrier()
    if o["stamp"]: P.s_memtime(s(sPtr+2,2)); P.wait(lgkm=0)

    def qk(c, kb, sbuf):
        return [Ins(MF, [v(vS[sbuf],16), fa(vK0[kb],4), v(vQ0[c],4), 0]),
                (Ins("v_mfma_f32_32x32x8_bf16", [v(vS[sbuf],16), v(vK1[kb],2), v(vQ1[c],2), v(vS[sbuf],16)]) if o["qk8"] else
                 Ins(MF, [v(vS[sbuf],16), v(vK1[kb],4), v(vQ1[c],4), v(vS[sbuf],16)]))]
    def pv(c, vb, pb):
        return [Ins(MF, [v(vO[c],16), fa(vV[vb],4), v(vP[pb],4), v(vO[c],16)]),
                Ins(MF, [v(vO[c],16), fa(vV[vb]+4,4), v(vP[pb]+4,4), v(vO[c],16)])]
    def rdK(kb, off): return [Ins("ds_read_b128", [fa(vK0[kb],4), v(vKA)], f"offset:{off}"),
                              Ins("ds_read_b32", [v(vK1[kb]), v(vEA)], f"offset:{off}")]
    def rdV(vb, off): return [Ins("ds_read_b128", [fa(vV[vb],4), v(vVA)], f"offset:{off}"),
                              Ins("ds_read_b128", [fa(vV[vb]+4,4), v(vVA)], f"offset:{off+608}")]

    P.label("L_at_max")
    for c in range(4):
        P.v_mov_b32(v(vQ1[c]+1), 0); P.v_mov_b32(v(vQ1[c]+2), 0); P.v_mov_b32(v(vM[c]), 0xff800000)
    P.v_mov_b32(v(5), v(vKA)); P.v_mov_b32(v(6), v(vEA))
    P.loop_begin("L_at_maxloop")
    P.ds_read_b128(fa(vK0[0],4), v(5)); P.ds_read_b32(v(vK1[0]), v(6))
    P.v_add_u32(v(5), KVREC, v(5)); P.v_add_u32(v(6), KVREC, v(6))
    for cc in range(2):
        for c2 in range(2): P.extend(qk(2*cc+c2, 0, c2))
        for c2 in range(2):
            for i in range(8): P.v_max3_f32(v(vM[2*cc+c2]), v(vM[2*cc+c2]), v(vS[c2]+2*i), v(vS[c2]+2*i+1))
    P.s_sub_u32(s(sMC), s(sMC), 1); P.s_cmp_lg_u32(s(sMC), 0); P.s_cbranch_scc1("L_at_maxloop")
    P.loop_end()
    for c in range(4):
        P.v_mov_b32(v(5), v(vM[c]))
        P.v_permlane32_swap_b32(v(5), v(vM[c]))
        P.v_max_f32(v(5), v(5), v(vM[c]))
        P.v_xor_b32(v(5), 0x80000000, v(5))
        P.v_and_b32(v(6), 0xffff0000, v(5))
        P.v_sub_f32(v(5), v(5), v(6))
        P.v_and_b32(v(7), 0xffff0000, v(5))
        P.v_sub_f32(v(5), v(5), v(7))
        P.v_lshrrev_b32(v(6), 16, v(6))
        P.v_or_b32(v(6), v(6), v(7))
        P.v_lshrrev_b32(v(5), 16, v(5))
        if o["qk8"]:
            P.v_cndmask_b32(v(vQ1[c]+1), v(5), v(6), s(sEX,2))
        else:
            P.v_cndmask_b32(v(vQ1[c]+1), 0, v(6), s(sEX,2))
            P.v_cndmask_b32(v(vQ1[c]+2), 0, v(5), s(sEX,2))
    for c in range(4):
        for i in range(16): P.v_mov_b32(v(vO[c]+i), 0)
    for i in range(8): P.v_mov_b32(v(vP[1]+i), 0); (P.v_accvgpr_write_b32(a(vV[1]+i), 0) if o.get("agpr") else P.v_mov_b32(v(vV[1]+i), 0))
    for i in range(8, 16): P.v_mov_b32(v(vS[1]+i), 0)
    P.extend(rdK(0, 0)); P.extend(rdV(0, 0))
    P.extend(qk(0, 0, 0))
    if o["stamp"] == 2: P.s_memtime(s(sPtr+2,2)); P.wait(lgkm=0)
    P.s_mov_b32(s(sCNT), 64//UN)
    P.s_nop(10)
    P.raw(".p2align 3")
    P.loop_begin("L_at_loop")
    for u in range(UN):
        for c in range(4):
            n = 4*u + c
            sb_, pb = n % 2, n % 2
            nc = (c+1) % 4; nkb = (u + (1 if c == 3 else 0)) % 2
            q2 = qk(nc, nkb, 1-sb_)
            pc = (c-1) % 4; pvb = (u - (1 if c == 0 else 0)) % 2
            p2 = pv(pc, pvb, 1-pb)
            mf = [p2[0], q2[0], q2[1], p2[1]]
            extra = []
            if o.get("onewait"):
                if c == 1: extra = rdK((u+1) % 2, (u+1)*KVREC) + rdV((u+1) % 2, (u+1)*KVREC)
            else:
                if c == 0 and not o.get("nord"): extra = rdK((u+1) % 2, (u+1)*KVREC)
                if c == 2 and not o.get("nord"): extra = rdV((u+1) % 2, (u+1)*KVREC)
            if u == UN-1 and c == 3:
                extra = [Ins("v_add_u32", [v(x), UN*KVREC, v(x)]) for x in (vKA, vEA, vVA)]
            DL = o["DL"]
            mpos = o["mpos"]
            for e in range(16):
                if o.get("onewait") and c == 3 and e == 0: P.wait(lgkm=0)
                for g in range(4):
                    if mpos[g] == e:
                        P.add(mf[g])
                        if o.get("rdpos") == "mfma" and extra: P.add(extra.pop(0))
                r = vS[sb_] + e
                if o.get("noexp"): pass
                elif o.get("expsrc"): P.v_exp_f32(v(r), v(200+e))
                else: P.v_exp_f32(v(r), v(r))
                for j in range(8):
                    if o.get("nocvt"): break
                    if 2*j+1+DL == e: P.v_cvt_pk_bf16_f32(v(vP[pb]+j), v(vS[sb_]+2*j), v(vS[sb_]+2*j+1))
                    if 2*j+1+DL == e+16: P.v_cvt_pk_bf16_f32(v(vP[1-pb]+j), v(vS[1-sb_]+2*j), v(vS[1-sb_]+2*j+1))
                if e % 4 == 1 and extra and not o.get("rdpos"): P.add(extra.pop(0))
                if o.get("rdpos") == "burst" and e == 1:
                    while extra: P.add(extra.pop(0))
                if o.get("rdpos") == "cvt" and e % 4 == 2 and extra: P.add(extra.pop(0))
    P.s_sub_u32(s(sCNT), s(sCNT), 1)
    P.s_or_b32(s(sT0), s(sCNT), s(sREDO))
    P.s_cmp_lg_u32(s(sT0), 64//UN - 1)
    P.s_cbranch_scc1("L_at_nobar")
    P.wait(vm=0)
    P.s_barrier()
    P.label("L_at_nobar")
    P.s_cmp_lg_u32(s(sCNT), 0)
    P.s_cbranch_scc1("L_at_loop")
    P.loop_end()
    for j in range(8):
        if 2*j+1+o["DL"] >= 16: P.v_cvt_pk_bf16_f32(v(vP[1]+j), v(vS[1]+2*j), v(vS[1]+2*j+1))
    P.extend(pv(3, (UN-1) % 2, 1))
    P.v_subrev_u32(v(vKA), 64*KVREC, v(vKA)); P.v_subrev_u32(v(vEA), 64*KVREC, v(vEA)); P.v_subrev_u32(v(vVA), 64*KVREC, v(vVA))
    if o["stamp"]: P.s_memtime(s(sPtr+4,2)); P.wait(lgkm=0)
    P.s_cmp_lg_u32(s(sREDO), 0)
    P.s_cbranch_scc1("L_at_out")
    P.v_mov_b32(v(5), 0)
    P.v_mov_b32(v(6), 0)
    for c in range(4):
        for i in range(10): P.v_fma_f32(v(5+(i&1)), v(vO[c]+i), 0, v(5+(i&1)))
    P.v_add_f32(v(5), v(5), v(6))
    P.v_max3_f32(v(6), v(vO[0]+10), v(vO[1]+10), v(vO[2]+10))
    P.v_max_f32(v(6), v(6), v(vO[3]+10))
    P.v_add_f32(v(5), v(5), v(6))
    P.v_mov_b32(v(7), f2u(2.0**(-100 if o["force_redo"] else 64)))
    P.v_cmp_nlt_f32("vcc", v(5), v(7))
    P.s_cmp_eq_u64("vcc", 0)
    P.s_cbranch_scc1("L_at_out")
    P.s_mov_b32(s(sREDO), 0x100)
    P.s_mov_b32(s(sMC), 64)
    P.wait(vm=0, lgkm=0)
    P.s_nop(15)
    P.s_branch("L_at_max")
    P.label("L_at_out")
    P.s_nop(7)
    for c in range(4):
        P.v_rcp_f32(v(5), v(vO[c]+10))
        for i in range(10): P.v_mul_f32(v(vO[c]+i), v(vO[c]+i), v(5))
        t = vS[c % 2] + 8*(c // 2)
        for i in range(5): P.v_cvt_pk_bf16_f32(v(t+i+(1 if i == 4 else 0)*0), v(vO[c]+2*i), v(vO[c]+2*i+1))
        P.buffer_store_dwordx4(v(t,4), v(vOA), s(sO,4), s(sOM), m="offen")
        P.s_mov_b64("exec", s(sEX,2))
        P.buffer_store_dword(v(t+4), v(vOA), s(sO,4), s(sOE), m="offen")
        P.s_mov_b64("exec", -1)
        if c < 3: P.s_add_u32(s(sOM), s(sOM), 36864); P.s_add_u32(s(sOE), s(sOE), 36864)
    if o["stamp"]:
        P.wait(vm=0)
        P.s_memtime(s(sT0-1,2)) if False else None
        P.s_sub_u32(s(sPtr+4), s(sPtr+4), s(sPtr+2))
        P.s_add_u32(s(sWS), s(sPtr), WS_TS); P.s_addc_u32(s(sWS+1), s(sPtr+1), 0)
        P.s_mov_b32(s(sWS+2), 1<<16)
        P.s_lshl_b32(s(sT1), "s2", 2); P.s_add_u32(s(sT1), s(sT1), s(sWV)); P.s_lshl_b32(s(sT1), s(sT1), 4)
        P.v_mov_b32(v(8), s(sPtr+4)); P.v_mov_b32(v(9), s(sREDO)); P.v_mov_b32(v(10), 0); P.v_mov_b32(v(11), 0)
        P.v_mov_b32(v(6), 0)
        P.buffer_store_dwordx4(v(8,4), v(6), s(sWS,4), s(sT1), m="offen")
    P.s_endpgm()

def standalone(opts=None):
    P = Prog()
    P.s_cmp_ge_u32("s2", 128); P.s_cbranch_scc1("L_at_exit")
    P.s_and_b32("s4", "s2", 31)
    P.s_lshr_b32("s5", "s2", 5)
    gen_attn(P, "s4", "s5", sb=8, opts=opts)
    P.label("L_at_exit"); P.s_endpgm()
    body = P.finalize(verbose=True)
    return "; @launch kernel=attn_kernel grid=(128,1,1) block=(256,1,1) lds=163840\n.amdgcn_target \"amdgcn-amd-amdhsa--gfx950\"\n" + kernel_text("attn_kernel", body, 512, 256).replace("denorm_mode_32 3", "denorm_mode_32 %d" % (opts or {}).get("dn", 3))

if __name__ == "__main__":
    open("attn_test.s", "w").write(standalone(dict(stamp=True)))
```

```python
from asmb import *
from layout import *
from mlp import f2u, LOG2E
import math
MF = "v_mfma_f32_16x16x32_bf16"
XBASE, WBASE, EBASE, CSBASE = 0, 65536, 131072, 139264
K1_LDS = 139264 + 1024

def gen_k1(opts=None):
    o = dict(stamp=False); o.update(opts or {})
    P = Prog()
    sX, sW, sWS, sG = 8, 12, 16, 20
    sRT, sCG, sWV, sCGL = 24, 25, 26, 27
    sSX = 28
    sSW = 32
    sSE = 36
    sRS64 = 38
    sMX, sMW, sME = 39, 40, 41
    sT = [42, 43, 44, 45, 46, 47]
    sPtr = 48
    sRS, sCS, sE0, sE1 = 58, 59, 60, 61
    sSC = 62; sHS = 63; sHSE = 64; sB0 = 65; sB1 = 66; sST = 68
    vL, vA, vI = 1, 2, 3
    vXO = [4, 5]; vWO = [6, 7]; vEO = 8
    vXA = [9, 10]; vWA = list(range(11, 19)); vEA = 19; vCA = [20, 21]
    vT = list(range(22, 32))
    vXF = [[32, 36], [40, 44]]
    vWF = 48; NWF = 8
    vACC = 80
    vAUX = 152
    vCS = 160
    vONE = 172
    vSQ = [176, 177]
    vGF = 180
    acc = lambda nt, st: vACC + (nt*2+st)*4

    P.s_cmp_ge_u32("s2", 256); P.s_cbranch_scc1("L_k1_exit")
    if o["stamp"]: P.s_memtime(s(sST,2))
    P.s_load_dwordx2(s(sPtr,2), "s[0:1]", KA_X)
    P.s_load_dwordx2(s(sPtr+2,2), "s[0:1]", KA_WQKV)
    P.s_load_dwordx2(s(sPtr+4,2), "s[0:1]", KA_WS)
    P.s_load_dwordx2(s(sPtr+8,2), "s[0:1]", KA_W1)
    P.s_and_b32(s(sT[0]), "s2", 7); P.s_lshr_b32(s(sT[1]), "s2", 3)
    P.s_and_b32(s(sRT), s(sT[0]), 1); P.s_lshl_b32(s(sRT), s(sRT), 3)
    P.s_and_b32(s(sT[2]), s(sT[1]), 7); P.s_add_u32(s(sRT), s(sRT), s(sT[2]))
    P.s_lshr_b32(s(sCGL), s(sT[1]), 3)
    P.s_lshr_b32(s(sCG), s(sT[0]), 1)
    P.v_lshrrev_b32(v(22), 6, "v0"); P.v_and_b32(v(vL), 63, "v0")
    P.v_readfirstlane_b32(s(sWV), v(22))
    P.v_lshrrev_b32(v(vA), 4, v(vL)); P.v_and_b32(v(vI), 15, v(vL))
    P.s_cmp_eq_u32(s(sCG), 3)
    P.csel(s(sRS), 1152, 3456); P.csel(s(sCS), 32, 36)
    P.csel(s(sE0), 4, 36); P.csel(s(sE1), 256, 32)
    P.s_lshl_b32(s(sRS64), s(sRS), 6)
    P.s_cmp_eq_u32(s(sCG), 2)
    P.csel(s(sT[0]), KA_W2, KA_GW)
    P.s_load_dwordx2(s(sPtr+6,2), "s[0:1]", s(sT[0]))
    P.v_lshrrev_b32(v(22), 3, v(vL))
    P.v_lshrrev_b32(v(23), 5, v(vL)); P.v_lshlrev_b32(v(23), 3, v(23))
    P.v_and_b32(v(24), 3, v(22)); P.v_add_u32(v(23), v(23), v(24))
    P.s_cselect_b64(s(sT[2],2), -1, 0)
    P.v_cndmask_b32(v(24), v(22), v(23), s(sT[2],2))
    P.v_and_b32(v(25), 7, v(vL)); P.v_xor_b32(v(26), v(25), v(vA))
    P.v_lshlrev_b32(v(26), 4, v(26))
    P.s_movk_i32(s(sT[1]), 1152)
    P.v_mad_u32_u24(v(vXO[0]), v(24), s(sT[1]), v(26))
    P.v_xor_b32(v(vXO[1]), 64, v(vXO[0]))
    P.s_lshl_b32(s(sT[0]), s(sRT), 7); P.s_lshl_b32(s(sT[1]), s(sWV), 5); P.s_add_u32(s(sT[0]), s(sT[0]), s(sT[1]))
    P.s_mul_i32(s(sT[0]), s(sT[0]), 1152)
    for i in range(4):
        P.s_cmp_eq_u32(s(sCG), 2)
        P.csel(s(sT[1]), (16*(i&1) + 4*(i>>1))*1152 - 1024*i, 8*i*1152 - 1024*i)
        P.s_add_u32(s(sSX+i), s(sT[0]), s(sT[1]))
    P.v_lshrrev_b32(v(26), 1, v(vI)); P.v_xor_b32(v(26), v(26), v(vA))
    P.v_and_b32(v(27), 1, v(vI)); P.v_lshlrev_b32(v(27), 4, v(27))
    P.v_mad_u32_u24(v(27), v(vA), s(sRS), v(27))
    P.v_mad_u32_u24(v(vWO[0]), v(26), s(sCS), v(27))
    P.v_xor_b32(v(26), 4, v(26))
    P.v_mad_u32_u24(v(vWO[1]), v(26), s(sCS), v(27))
    P.v_mul_u32_u24(v(vEO), s(sRS), v(23))
    P.v_mad_u32_u24(v(vEO), v(25), s(sE0), v(vEO))
    P.v_add_u32(v(vEO), s(sE1), v(vEO))
    P.s_mul_i32(s(sT[0]), s(sCG), 1152); P.s_cmp_eq_u32(s(sCG), 3); P.csel(s(sT[0]), 0, s(sT[0]))
    P.s_mul_i32(s(sT[1]), s(sCGL), 288); P.s_add_u32(s(sT[0]), s(sT[0]), s(sT[1]))
    P.s_lshl_b32(s(sT[1]), s(sWV), 4); P.s_mul_i32(s(sT[1]), s(sT[1]), s(sRS)); P.s_add_u32(s(sT[0]), s(sT[0]), s(sT[1]))
    P.s_lshl_b32(s(sT[1]), s(sRS), 2)
    P.s_mov_b32(s(sSW), s(sT[0])); P.s_mov_b32(s(sSE), s(sT[0]))
    P.s_sub_u32(s(sT[2]), s(sT[1]), 1024)
    for i in range(1, 4): P.s_add_u32(s(sSW+i), s(sSW+i-1), s(sT[2]))
    P.s_sub_u32(s(sT[2]), s(sT[1]), 256); P.s_add_u32(s(sSE+1), s(sSE), s(sT[2]))
    P.s_lshl_b32(s(sMX), s(sWV), 12); P.s_add_u32(s(sMW), s(sMX), WBASE)
    P.s_lshl_b32(s(sME), s(sWV), 9); P.s_add_u32(s(sME), s(sME), EBASE)
    P.s_mov_b32(s(sX), s(sPtr)); P.s_mov_b32(s(sX+1), s(sPtr+1)); P.s_mov_b32(s(sX+2), ACT_BYTES); P.s_mov_b32(s(sX+3), 0x20000)
    P.s_cmp_eq_u32(s(sCG), 3)
    P.csel(s(sW), s(sPtr+8), s(sPtr+2)); P.csel(s(sW+1), s(sPtr+9), s(sPtr+3))
    P.csel(s(sW+2), 576*576*2, 576*1728*2); P.s_mov_b32(s(sW+3), 0x20000)
    P.s_mov_b32(s(sWS), s(sPtr+4)); P.s_mov_b32(s(sWS+1), s(sPtr+5)); P.s_mov_b32(s(sWS+2), WS_KV + 32*KVHEAD); P.s_mov_b32(s(sWS+3), 0x20000)
    P.s_cmp_eq_u32(s(sCG), 2)
    P.s_mov_b32(s(sG), s(sPtr+6)); P.s_mov_b32(s(sG+1), s(sPtr+7)); P.csel(s(sG+2), 576*576*2, 1152); P.s_mov_b32(s(sG+3), 0x20000)

    def dma_chunk(c):
        st = c % 4
        L = []
        L.append(Ins("s_add_u32", ["m0", s(sMW), st*16384]))
        for i in range(4): L.append(Ins("buffer_load_dwordx4", [v(vWO[i>>1]), s(sW,4), s(sSW+i)], f"offen offset:{i*1024} lds"))
        L.append(Ins("s_add_u32", ["m0", s(sMX), st*16384]))
        for i in range(4): L.append(Ins("buffer_load_dwordx4", [v(vXO[i&1]), s(sX,4), s(sSX+i)], f"offen offset:{i*1024} lds"))
        L.append(Ins("s_add_u32", ["m0", s(sME), st*2048]))
        for i in range(2): L.append(Ins("buffer_load_dword", [v(vEO), s(sW,4), s(sSE+i)], f"offen offset:{i*256} lds"))
        if c < 8:
            for r in (vWO[0], vWO[1], vEO): L.append(Ins("v_add_u32", [v(r), s(sRS64), v(r)]))
            for r in vXO: L.append(Ins("v_add_u32", [v(r), 128, v(r)]))
        return L

    P.s_cmp_eq_u32(s(sCG), 3); P.s_cbranch_scc1("L_k1_noearly")
    P.s_cmp_eq_u32(s(sCG), 2); P.s_cbranch_scc1("L_k1_earlyV")
    P.v_lshlrev_b32(v(22), 4, v(vA))
    for ks in range(18): P.buffer_load_dwordx4(v(vGF+4*ks,4), v(22), s(sG,4), 0, m=f"offen offset:{64*ks}")
    P.s_branch("L_k1_noearly")
    P.label("L_k1_earlyV")
    P.s_lshl_b32(s(sT[0]), s(sCGL), 4); P.s_add_u32(s(sT[0]), s(sT[0]), s(sRT)); P.s_cmp_ge_u32(s(sT[0]), 18); P.s_cbranch_scc1("L_k1_noearly")
    P.s_lshl_b32(s(sT[0]), s(sT[0]), 2); P.s_add_u32(s(sT[0]), s(sT[0]), s(sWV)); P.s_mul_i32(s(sT[0]), s(sT[0]), 8*1152)
    P.v_lshrrev_b32(v(22), 3, v(vL)); P.v_lshlrev_b32(v(23), 4, v(25))
    P.s_movk_i32(s(sT[1]), 1152)
    P.v_mad_u32_u24(v(22), v(22), s(sT[1]), v(23))
    for j in range(9): P.buffer_load_dwordx4(v(vGF+4*j,4), v(22), s(sG,4), s(sT[0]), m=f"offen offset:{128*j}")
    P.label("L_k1_noearly")
    for c in range(4): P.extend(dma_chunk(c))
    if o["stamp"] == 2: P.s_memtime(s(74,2)); P.wait(lgkm=0)
    P.v_lshrrev_b32(v(22), 2, v(vI))
    P.v_and_b32(v(23), 1, v(vA)); P.v_lshl_or_b32(v(24), v(23), 2, v(22))
    P.v_lshl_add_u32(v(25), v(vA), 3, v(22))
    P.v_and_b32(v(26), 3, v(vI)); P.v_lshlrev_b32(v(26), 3, v(26))
    P.v_lshl_add_u32(v(27), v(25), 8, v(26)); P.v_add_u32(v(27), WBASE, v(27))
    for nt in range(8):
        P.v_xor_b32(v(28), nt, v(24)); P.v_lshl_add_u32(v(vWA[nt]), v(28), 5, v(27))
    for q in range(2):
        P.s_add_u32(s(sT[0]), s(sWV), 4*q)
        P.v_xor_b32(v(28), s(sT[0]), v(24)); P.v_lshl_add_u32(v(vCA[q]), v(28), 5, v(27))
    P.v_lshrrev_b32(v(28), 1, v(vA)); P.v_lshlrev_b32(v(28), 4, v(28)); P.v_add_u32(v(28), v(28), v(24))
    P.v_lshl_add_u32(v(vEA), v(28), 5, v(26)); P.v_add_u32(v(vEA), EBASE, v(vEA))
    P.v_lshrrev_b32(v(28), 1, v(vI)); P.v_xor_b32(v(28), v(28), v(vA)); P.v_lshlrev_b32(v(28), 4, v(28))
    P.v_lshl_add_u32(v(vXA[0]), v(vI), 7, v(28)); P.v_add_u32(v(vXA[0]), s(sMX), v(vXA[0]))
    P.v_xor_b32(v(vXA[1]), 64, v(vXA[0]))
    for i in range(4): P.v_mov_b32(v(vONE+i), 0x3f803f80)
    P.v_mov_b32(v(vSQ[0]), 0); P.v_mov_b32(v(vSQ[1]), 0)

    def mainloop(role):
        frc = [0]
        for c in range(9):
            stg = c % 4
            P.wait(vm={0: 30, 7: 10, 8: 0}.get(c, 20))
            P.s_barrier()
            if o["stamp"] == 2: P.s_memtime(s(76+2*c,2)); P.wait(lgkm=0)
            dma = dma_chunk(c+3) if 1 <= c <= 5 else []
            rd = []; mf = []
            for ks in range(2):
                xf = vXF[ks]
                rd.append(("x", [Ins("ds_read_b128", [v(xf[st],4), v(vXA[ks])], f"offset:{stg*16384 + st*2048}") for st in range(2)]))
                tiles = [(nt, vWA[nt], stg*16384 + ks*8192, 1024) for nt in range(8)] + [(8, vEA, stg*2048 + ks*1024, 256)]
                if role == "w": tiles += [(9+q, vCA[q], stg*16384 + ks*8192, 1024) for q in range(2)]
                first = (c == 0 and ks == 0)
                for (nt, ar, off, du) in tiles:
                    fr = vWF + 4*(frc[0] % NWF); frc[0] += 1
                    rd.append(("w", [Ins("ds_read_b64_tr_b16", [v(fr,2), v(ar)], f"offset:{off}"),
                                     Ins("ds_read_b64_tr_b16", [v(fr+2,2), v(ar)], f"offset:{off+du}")]))
                    g = []
                    if nt <= 8:
                        for st in range(2):
                            d = v(acc(nt, st), 4)
                            A, B = (v(xf[st],4), v(fr,4)) if role == "v" else (v(fr,4), v(xf[st],4))
                            g.append(Ins(MF, [d, A, B, 0 if first else d]))
                    if role == "w" and nt >= 8:
                        d = v(vCS + 4*(nt-8), 4)
                        g.append(Ins(MF, [d, v(fr,4), v(vONE,4), 0 if first else d]))
                    if nt == 3 and role in ("qk", "w"):
                        for st in range(2):
                            d = v(vAUX + 4*st, 4)
                            A = v(vGF + 4*(2*c+ks), 4) if role == "qk" else v(vONE, 4)
                            g.append(Ins(MF, [d, A, v(xf[st],4), 0 if first else d]))
                    if role == "w" and nt in (1, 5):
                        st = 0 if nt == 1 else 1
                        for i in range(4): g.append(Ins("v_dot2c_f32_bf16", [v(vSQ[st]), v(xf[st]+i), v(xf[st]+i)]))
                    mf.append(g)
            PDW = 6
            ri = 0; wcount = 0
            def issue_reads(upto):
                nonlocal ri, wcount
                while ri < len(rd) and (wcount < upto or rd[ri][0] == "x"):
                    P.extend(rd[ri][1])
                    if rd[ri][0] == "w": wcount += 1
                    ri += 1
            issue_reads(PDW)
            for gi, g in enumerate(mf):
                P.add(g[0])
                issue_reads(gi + 1 + PDW)
                if dma:
                    P.add(dma.pop(0))
                    if dma and dma[0].cls != "salu" and gi % 2 == 0 and False: P.add(dma.pop(0))
                P.extend(g[1:])
            P.extend(dma)

    def stamp_out():
        if not o["stamp"]: return
        P.wait(vm=0)
        P.s_memtime(s(sST+4,2)); P.wait(lgkm=0)
        P.s_sub_u32(s(sST+2), s(sST+2), s(sST)); P.s_sub_u32(s(sST+4), s(sST+4), s(sST))
        P.s_add_u32(s(sWS), s(sPtr+4), WS_TS); P.s_addc_u32(s(sWS+1), s(sPtr+5), 0); P.s_mov_b32(s(sWS+2), 1<<16)
        P.s_lshl_b32(s(sT[1]), "s2", 2); P.s_add_u32(s(sT[1]), s(sT[1]), s(sWV)); P.s_lshl_b32(s(sT[1]), s(sT[1]), 4)
        P.v_mov_b32(v(24), s(sST+2)); P.v_mov_b32(v(25), s(sST+4)); P.v_mov_b32(v(26), s(sCG)); P.v_mov_b32(v(27), 0); P.v_mov_b32(v(22), 0)
        P.buffer_store_dwordx4(v(24,4), v(22), s(sWS,4), s(sT[1]), m="offen")
        if o["stamp"] == 2:
            P.s_lshl_b32(s(sT[1]), s(sT[1]), 2); P.s_add_u32(s(sT[1]), s(sT[1]), 1<<14); P.s_mov_b32(s(sWS+2), 1<<20)
            for c in range(10):
                P.s_sub_u32(s(74+2*c), s(74+2*c), s(sST)); P.v_mov_b32(v(32+c), s(74+2*c))
                P.buffer_store_dword(v(32+c), v(22), s(sWS,4), s(sT[1]), m=f"offen offset:{4*c}")
    def stamp_mid():
        if o["stamp"]: P.s_memtime(s(sST+2,2)); P.wait(lgkm=0)

    P.s_lshl_b32(s(sB0), s(sRT), 2); P.s_add_u32(s(sB0), s(sB0), s(sWV))
    P.s_cmp_eq_u32(s(sCG), 2); P.s_cbranch_scc1("L_k1_v")
    P.s_cmp_eq_u32(s(sCG), 3); P.s_cbranch_scc1("L_k1_w")
    mainloop("qk")
    stamp_mid()
    P.s_cmp_eq_u32(s(sCG), 0)
    P.csel(s(sSC), f2u(LOG2E/math.sqrt(18)), f2u(1.0))
    P.csel(s(sHS), 65536, KVHEAD); P.csel(s(sHSE), 8192, KVHEAD)
    P.csel(s(sT[0]), 1024, KVREC); P.csel(s(sT[1]), WS_QM, WS_KV)
    P.csel(s(sT[2]), 128, KVREC); P.csel(s(sT[3]), WS_QE, WS_KV + 2240)
    P.s_cselect_b64(s(sT[4],2), -1, 0)
    P.s_mul_i32(s(sB1), s(sB0), s(sT[2])); P.s_add_u32(s(sB1), s(sB1), s(sT[3]))
    P.s_mul_i32(s(sT[0]), s(sB0), s(sT[0])); P.s_add_u32(s(sT[0]), s(sT[0]), s(sT[1]))
    P.s_lshl_b32(s(sT[2]), s(sCGL), 3)
    P.s_mul_i32(s(sT[1]), s(sT[2]), s(sHS)); P.s_add_u32(s(sT[0]), s(sT[0]), s(sT[1]))
    P.s_mul_i32(s(sT[1]), s(sT[2]), s(sHSE)); P.s_add_u32(s(sB1), s(sB1), s(sT[1]))
    P.v_and_b32(v(22), 3, v(vI)); P.v_bfe_u32(v(23), v(vI), 2, 1); P.v_lshl_or_b32(v(22), v(23), 3, v(22))
    P.v_bfe_u32(v(23), v(vI), 3, 1); P.v_lshl_or_b32(v(22), v(23), 2, v(22))
    P.v_cndmask_b32(v(22), v(22), v(vI), s(sT[4],2))
    P.v_lshrrev_b32(v(23), 1, v(vA)); P.v_lshlrev_b32(v(23), 9, v(23)); P.v_lshl_add_u32(v(23), v(22), 4, v(23))
    P.v_and_b32(v(24), 1, v(vA)); P.v_lshl_add_u32(v(23), v(24), 3, v(23))
    P.v_lshlrev_b32(v(24), 1, v(vA)); P.v_mul_lo_u32(v(24), v(24), s(sHSE)); P.v_lshl_add_u32(v(24), v(22), 2, v(24))
    for nt in range(9):
        for st in range(2):
            r = acc(nt, st)
            for i in range(4): P.v_mul_f32(v(r+i), s(sSC), v(r+i))
            P.v_cvt_pk_bf16_f32(v(r), v(r), v(r+1)); P.v_cvt_pk_bf16_f32(v(r+1), v(r+2), v(r+3))
            if nt < 8:
                P.buffer_store_dwordx2(v(r,2), v(23), s(sWS,4), s(sT[0]), m=f"offen offset:{st*256}")
            else:
                P.buffer_store_dword(v(r), v(24), s(sWS,4), s(sB1), m=f"offen offset:{st*64}")
                P.s_add_u32(s(sT[1]), s(sB1), s(sHSE))
                P.buffer_store_dword(v(r+1), v(24), s(sWS,4), s(sT[1]), m=f"offen offset:{st*64}")
        if nt < 7: P.s_add_u32(s(sT[0]), s(sT[0]), s(sHS))
    P.s_or_b32(s(sT[1]), s(sCG), s(sCGL)); P.s_cmp_lg_u32(s(sT[1]), 0); P.s_cbranch_scc1("L_k1_qkdone")
    P.v_lshlrev_b32(v(22), 2, v(vI))
    P.s_lshl_b32(s(sT[1]), s(sB0), 7); P.s_add_u32(s(sT[1]), s(sT[1]), WS_GATE)
    for st in range(2):
        r = vAUX + 4*st
        P.v_mul_f32(v(r), f2u(-LOG2E), v(r)); P.v_exp_f32(v(r), v(r)); P.v_add_f32(v(r), 1.0, v(r)); P.v_rcp_f32(v(r), v(r))
        P.s_nop(0)
        P.buffer_store_dword(v(r), v(22), s(sWS,4), s(sT[1]), m=f"offen offset:{st*64}")
    P.label("L_k1_qkdone")
    stamp_out()
    P.s_endpgm()
    P.label("L_k1_v")
    mainloop("v")
    stamp_mid()
    P.s_mul_i32(s(sT[0]), s(sB0), KVREC); P.s_add_u32(s(sT[0]), s(sT[0]), WS_KV + 1024)
    P.s_mul_i32(s(sT[1]), s(sCGL), 8*KVHEAD); P.s_add_u32(s(sT[0]), s(sT[0]), s(sT[1]))
    P.s_mov_b32(s(sB1), s(sT[0]))
    P.v_mul_u32_u24(v(22), 304, v(vA)); P.v_lshl_add_u32(v(23), v(vI), 4, v(22))
    P.s_mov_b32(s(sT[2]), KVHEAD)
    P.v_lshrrev_b32(v(24), 1, v(vI)); P.v_mul_lo_u32(v(24), v(24), s(sT[2]))
    P.v_and_b32(v(25), 1, v(vI)); P.v_lshl_add_u32(v(24), v(25), 4, v(24)); P.v_add3_u32(v(24), v(24), v(22), 64); P.v_add_u32(v(24), 192, v(24))
    P.v_bfe_u32(v(25), v(vL), 2, 3); P.v_mul_lo_u32(v(25), v(25), s(sT[2]))
    P.v_and_b32(v(26), 3, v(vL)); P.v_mul_u32_u24(v(26), 304, v(26)); P.v_add_u32(v(25), v(25), v(26)); P.v_add_u32(v(25), 288, v(25))
    P.buffer_store_dwordx4(v(vONE,4), v(25), s(sWS,4), s(sB1), m="offen")
    for nt in range(9):
        r = acc(nt, 0)
        P.v_cvt_pk_bf16_f32(v(r), v(r), v(r+1)); P.v_cvt_pk_bf16_f32(v(r+1), v(r+2), v(r+3))
        P.v_cvt_pk_bf16_f32(v(r+2), v(r+4), v(r+5)); P.v_cvt_pk_bf16_f32(v(r+3), v(r+6), v(r+7))
        if nt < 8: P.buffer_store_dwordx4(v(r,4), v(23), s(sWS,4), s(sT[0]), m="offen")
        else: P.buffer_store_dwordx4(v(r,4), v(24), s(sWS,4), s(sB1), m="offen")
        if nt < 7: P.s_add_u32(s(sT[0]), s(sT[0]), KVHEAD)
    P.s_lshl_b32(s(sT[0]), s(sCGL), 4); P.s_add_u32(s(sT[0]), s(sT[0]), s(sRT)); P.s_cmp_ge_u32(s(sT[0]), 18); P.s_cbranch_scc1("L_k1_vdone")
    P.v_mov_b32(v(22), 0); P.v_mov_b32(v(23), 0)
    for i in range(36): P.v_dot2c_f32_bf16(v(22 + (i & 1)), v(vGF+i), v(vONE))
    P.v_add_f32(v(22), v(22), v(23))
    for sh in (1, 2, 4):
        m = {1: "quad_perm:[1,0,3,2] row_mask:0xf bank_mask:0xf", 2: "quad_perm:[2,3,0,1] row_mask:0xf bank_mask:0xf", 4: "row_half_mirror row_mask:0xf bank_mask:0xf"}[sh]
        P.v_add_f32_dpp(v(22), v(22), v(22), m=m)
    P.v_mul_f32(v(22), f2u(1.0/576), v(22))
    P.v_and_b32(v(23), 0xffff0000, v(22)); P.v_sub_f32(v(24), v(22), v(23))
    P.v_lshrrev_b32(v(23), 16, v(23)); P.v_lshrrev_b32(v(24), 16, v(24))
    P.s_lshl_b32(s(sT[0]), s(sT[0]), 2); P.s_add_u32(s(sT[0]), s(sT[0]), s(sWV)); P.s_lshl_b32(s(sT[0]), s(sT[0]), 3)
    P.v_lshrrev_b32(v(25), 3, v(vL)); P.v_add_u32(v(25), s(sT[0]), v(25))
    P.v_and_b32(v(26), 0xfffffff3, v(25)); P.v_bfe_u32(v(27), v(25), 2, 1); P.v_lshl_or_b32(v(26), v(27), 3, v(26))
    P.v_bfe_u32(v(27), v(25), 3, 1); P.v_lshl_or_b32(v(26), v(27), 2, v(26)); P.v_lshlrev_b32(v(26), 1, v(26))
    P.s_mov_b32(s(sT[1]), WS_W2BAR)
    P.buffer_store_short(v(23), v(26), s(sWS,4), s(sT[1]), m="offen")
    P.buffer_store_short(v(24), v(26), s(sWS,4), s(sT[1]), m="offen offset:1152")
    P.label("L_k1_vdone")
    stamp_out()
    P.s_endpgm()
    P.label("L_k1_w")
    mainloop("w")
    stamp_mid()
    P.v_lshlrev_b32(v(22), 4, v(vA)); P.v_add_u32(v(22), CSBASE, v(22))
    P.s_lshl_b32(s(sT[0]), s(sWV), 6); P.v_add_u32(v(23), s(sT[0]), v(22))
    P.ds_write_b128(v(23), v(vCS+4,4)); P.ds_write_b128(v(23), v(vCS+8,4), m="offset:256")
    vMN = [24, 26]; vC1 = [32, 34]; vC2 = [36, 38]; vIR = [40, 42]
    k1 = -2*LOG2E*math.sqrt(2/math.pi)
    for st in range(2):
        q = vSQ[st]
        P.v_mov_b32(v(28), v(q)); P.v_permlane32_swap_b32(v(28), v(q)); P.v_add_f32(v(q), v(q), v(28))
        P.v_mov_b32(v(28), v(q)); P.v_permlane16_swap_b32(v(28), v(q)); P.v_add_f32(v(q), v(q), v(28))
        P.v_mul_f32(v(vMN[st]), f2u(1.0/576), v(vAUX+4*st))
        P.v_mul_f32(v(28), v(vMN[st]), v(vMN[st]))
        P.v_mov_b32(v(29), f2u(1.0/576))
        P.v_fma_f32(v(28), v(q), v(29), "-v28")
        P.v_max_f32(v(28), 0, v(28))
        P.v_add_f32(v(28), f2u(1e-5), v(28))
        P.v_sqrt_f32(v(vIR[st]), v(28)); P.v_rsq_f32(v(29), v(28))
        P.v_mul_f32(v(vC1[st]), f2u(k1), v(29)); P.v_mul_f32(v(29), v(29), v(29)); P.v_mul_f32(v(29), f2u(0.044715), v(29))
        P.v_mul_f32(v(vC2[st]), v(vC1[st]), v(29))
    P.s_cmp_lg_u32(s(sCGL), 0); P.s_cbranch_scc1("L_k1_nomean")
    P.v_lshlrev_b32(v(28), 2, v(vI)); P.s_lshl_b32(s(sT[1]), s(sB0), 7); P.s_add_u32(s(sT[1]), s(sT[1]), WS_MEANX)
    for st in range(2): P.buffer_store_dword(v(vMN[st]), v(28), s(sWS,4), s(sT[1]), m=f"offen offset:{st*64}")
    P.label("L_k1_nomean")
    P.wait(lgkm=0); P.s_barrier()
    vCSR = 180
    for nt in range(8): P.ds_read_b128(v(vCSR+4*nt,4), v(22), m=f"offset:{nt*64}")
    P.v_and_b32(v(28), 1, v(vA)); P.v_lshl_add_u32(v(28), v(28), 5, v(vI)); P.v_lshrrev_b32(v(29), 1, v(vA))
    P.v_lshlrev_b32(v(29), 3, v(29)); P.v_lshl_add_u32(v(23), v(28), 4, v(29))
    P.s_mul_i32(s(sT[0]), s(sB0), 36864); P.s_mul_i32(s(sT[1]), s(sCGL), 9216); P.s_add_u32(s(sT[0]), s(sT[0]), s(sT[1])); P.s_add_u32(s(sT[0]), s(sT[0]), WS_H)
    bc = "op_sel_hi:[1,0,0]"
    for nt in [8] + list(range(8)):
        cs = vCS if nt == 8 else vCSR + 4*nt
        for st in range(2):
            r = acc(nt, st); t = 48 + 4*st
            for p in range(2):
                P.v_pk_fma_f32(v(r+2*p,2), v(cs+2*p,2), v(vMN[st],2), v(r+2*p,2), m="op_sel_hi:[1,0,1] neg_lo:[0,1,0] neg_hi:[0,1,0]")
            for p in range(2): P.v_pk_mul_f32(v(t+2*p,2), v(r+2*p,2), v(r+2*p,2))
            for p in range(2): P.v_pk_fma_f32(v(t+2*p,2), v(t+2*p,2), v(vC2[st],2), v(vC1[st],2), m=bc)
            for p in range(2): P.v_pk_mul_f32(v(t+2*p,2), v(t+2*p,2), v(r+2*p,2))
            for i in range(4): P.v_exp_f32(v(t+i), v(t+i))
            for p in range(2): P.v_pk_fma_f32(v(t+2*p,2), v(t+2*p,2), v(vIR[st],2), v(vIR[st],2), m=bc)
            for i in range(4): P.v_rcp_f32(v(t+i), v(t+i))
            for p in range(2): P.v_pk_mul_f32(v(t+2*p,2), v(t+2*p,2), v(r+2*p,2))
            P.v_cvt_pk_bf16_f32(v(r), v(t), v(t+1)); P.v_cvt_pk_bf16_f32(v(r+1), v(t+2), v(t+3))
            P.s_add_u32(s(sT[1]), s(sT[0]), nt*1024)
            P.buffer_store_dwordx2(v(r,2), v(23), s(sWS,4), s(sT[1]), m=f"offen offset:{st*256}")
    stamp_out()
    P.label("L_k1_exit")
    P.s_endpgm()
    return P

def text(opts=None, verbose=False):
    return kernel_text("k1_kernel", gen_k1(opts).finalize(verbose=verbose), 256, 256)
LAUNCH = f"; @launch kernel=k1_kernel grid=(256,1,1) block=(256,1,1) lds={K1_LDS}\n"
def standalone(opts=None, verbose=False):
    return LAUNCH + ".amdgcn_target \"amdgcn-amd-amdhsa--gfx950\"\n" + text(opts, verbose)
if __name__ == "__main__":
    open("k1_test.s", "w").write(standalone(dict(stamp=True), True))
```

```python
from asmb import *
from layout import *
from mlp import f2u
MF = "v_mfma_f32_32x32x16_bf16"
AUXB = 73728
K24_LDS = 73728 + 4096

def gen(kind, opts=None):
    o = dict(stamp=False, LEAD=4); o.update(opts or {})
    k2 = kind == 2
    nm = f"k{kind}"
    P = Prog()
    sW, sWS, sA, sX = 8, 12, 16, 20
    sRT, sCG, sWV, sTT = 24, 25, 26, 27
    sSO, sM0, sAO = 28, 30, 31
    sT = [32, 33, 34, 35, 36, 37]
    sPtr = 40
    sST = 50
    vL = 1; vWO = 2; vWOE = 3; vRA = [4, 5, 6, 7]; vAA = 8; vAO = [9, 10, 11, 12]; vXO = 13; vTK = 14
    vT = list(range(16, 32))
    vF = 32; NF = 8
    vAF = 64
    vACC = [80, 96]; vAC2 = [112, 128]
    vXR = 144
    vS0, vS1 = 160, 161
    ACT = lambda st: a(4*st, 4)
    def PF(i):
        return a(144+4*i, 4) if i < 28 else v(164 + 4*(i-28), 4)

    ngemm = 144
    if k2:
        P.s_cmp_ge_u32("s2", 256); P.s_cbranch_scc1(f"L_{nm}_exit")
        P.s_cmp_ge_u32("s2", ngemm); P.s_cbranch_scc1(f"L_{nm}_pf")
    else:
        P.s_cmp_ge_u32("s2", ngemm); P.s_cbranch_scc1(f"L_{nm}_exit")
    if o["stamp"]: P.s_memtime(s(sST,2))
    P.s_load_dwordx2(s(sPtr,2), "s[0:1]", KA_W2 if k2 else KA_WO)
    P.s_load_dwordx2(s(sPtr+2,2), "s[0:1]", KA_WS)
    P.s_load_dwordx2(s(sPtr+4,2), "s[0:1]", KA_X if k2 else KA_OUT)
    P.s_and_b32(s(sT[0]), "s2", 7); P.s_lshr_b32(s(sT[1]), "s2", 3)
    P.s_and_b32(s(sRT), s(sT[1]), 1); P.s_lshl_b32(s(sT[0]), s(sT[0]), 1); P.s_add_u32(s(sRT), s(sRT), s(sT[0]))
    P.s_lshr_b32(s(sCG), s(sT[1]), 1)
    P.v_lshrrev_b32(v(16), 6, "v0"); P.v_and_b32(v(vL), 63, "v0")
    P.v_readfirstlane_b32(s(sWV), v(16))
    P.v_lshrrev_b32(v(16), 3, v(vL)); P.v_and_b32(v(17), 7, v(vL)); P.v_bfe_u32(v(18), v(vL), 4, 1)
    P.v_lshlrev_b32(v(18), 2, v(18)); P.v_xor_b32(v(17), v(17), v(18)); P.v_lshlrev_b32(v(17), 4, v(17))
    P.s_movk_i32(s(sT[2]), 1152)
    P.v_mad_u32_u24(v(vWO), v(16), s(sT[2]), v(17))
    if not k2:
        P.v_lshrrev_b32(v(18), 5, v(vL)); P.v_mul_u32_u24(v(18), 72, v(18))
        P.v_bfe_u32(v(19), v(vL), 4, 1); P.v_mad_u32_u24(v(18), v(19), 18, v(18))
        P.v_bfe_u32(v(19), v(vL), 3, 1); P.v_add_u32(v(18), v(18), v(19))
        P.v_mad_u32_u24(v(vWOE), v(18), s(sT[2]), v(17))
    P.s_lshl_b32(s(sTT), s(sRT), 2); P.s_add_u32(s(sTT), s(sTT), s(sWV))
    RPS = 16 if k2 else 18
    P.s_mul_i32(s(sSO), s(sWV), RPS*1152); P.s_lshl_b32(s(sT[0]), s(sCG), 7); P.s_add_u32(s(sSO), s(sSO), s(sT[0]))
    P.s_add_u32(s(sSO+1), s(sSO), 8*1152 - 1024)
    P.s_lshl_b32(s(sM0), s(sWV), 11)
    P.v_and_b32(v(vTK), 31, v(vL)); P.v_lshrrev_b32(v(19), 5, v(vL))
    if k2:
        P.s_lshl_b32(s(sT[0]), s(sTT), 5)
        P.s_mov_b32(s(sT[1]), 36864)
        for gi, sh in enumerate((1, -1, 2, -2)):
            P.s_sub_u32(s(sT[2]), s(sT[0]), sh) if sh > 0 else P.s_add_u32(s(sT[2]), s(sT[0]), -sh)
            P.v_add_u32(v(20), s(sT[2]), v(vTK))
            P.v_lshrrev_b32(v(21), 5, v(20)); P.v_min_u32(v(21), 64, v(21))
            P.v_and_b32(v(22), 31, v(20)); P.v_lshl_add_u32(v(22), v(19), 5, v(22)); P.v_lshlrev_b32(v(22), 4, v(22))
            P.v_mad_u32_u24(v(vAO[gi]), v(21), s(sT[1]), v(22))
        P.s_mov_b32(s(sAO), 0)
    else:
        P.v_lshlrev_b32(v(vAO[0]), 4, v(vL))
        P.s_mul_i32(s(sAO), s(sTT), 36864)
    P.s_lshl_b32(s(sT[0]), s(sTT), 5); P.v_add_u32(v(20), s(sT[0]), v(vTK))
    P.s_movk_i32(s(sT[2]), 1152); P.v_mul_lo_u32(v(vXO), v(20), s(sT[2]))
    P.v_lshl_add_u32(v(vXO), v(19), 4, v(vXO)); P.s_lshl_b32(s(sT[0]), s(sCG), 7); P.v_add_u32(v(vXO), s(sT[0]), v(vXO))
    P.s_mov_b32(s(sW), s(sPtr)); P.s_mov_b32(s(sW+1), s(sPtr+1)); P.s_mov_b32(s(sW+2), 576*1152); P.s_mov_b32(s(sW+3), 0x20000)
    P.s_mov_b32(s(sWS), s(sPtr+2)); P.s_mov_b32(s(sWS+1), s(sPtr+3)); P.s_mov_b32(s(sWS+2), WS_PART + 8*ACT_BYTES); P.s_mov_b32(s(sWS+3), 0x20000)
    P.s_add_u32(s(sA), s(sPtr+2), WS_H if k2 else WS_O); P.s_addc_u32(s(sA+1), s(sPtr+3), 0); P.s_mov_b32(s(sA+2), ACT_BYTES); P.s_mov_b32(s(sA+3), 0x20000)
    P.s_mov_b32(s(sX), s(sPtr+4)); P.s_mov_b32(s(sX+1), s(sPtr+5)); P.s_mov_b32(s(sX+2), ACT_BYTES); P.s_mov_b32(s(sX+3), 0x20000)

    NPER = 6 if k2 else 10
    def loads(g):
        L = [Ins("s_add_u32", ["m0", s(sM0), g*8192])]
        if (not k2) and g == 8:
            L += [Ins("s_mul_i32", [s(sSO), s(sWV), 144*1152]), Ins("s_lshl_b32", [s(sT[0]), s(sCG), 7]), Ins("s_add_u32", [s(sSO), s(sSO), s(sT[0])]),
                  Ins("s_add_u32", [s(sSO), s(sSO), 16*1152]), Ins("s_add_u32", [s(sSO+1), s(sSO), 36*1152 - 1024])]
        vo = vWOE if ((not k2) and g == 8) else vWO
        for i in range(2): L.append(Ins("buffer_load_dwordx4", [v(vo), s(sW,4), s(sSO+i)], f"offen offset:{i*1024} lds"))
        for i in range(2): L.append(Ins("s_add_u32", [s(sSO+i), s(sSO+i), 4*RPS*1152]))
        for j in range(4):
            st = 4*g + j
            vo = vAO[st // 9] if k2 else vAO[0]
            L.append(Ins("buffer_load_dwordx4", [ACT(st), v(vo), s(sA,4), s(sAO)], f"offen offset:{j*1024}"))
        L.append(Ins("s_add_u32", [s(sAO), s(sAO), 4096]))
        if not k2:
            L.append(Ins("s_add_u32", [s(sT[4]), s(sT[5]), WS_PART + g*ACT_BYTES if g < 8 else WS_X1C]))
            for j in range(4): L.append(Ins("buffer_load_dwordx4", [PF(4*g+j), v(vAO[0]), s(sWS,4), s(sT[4])], f"offen offset:{j*1024}"))
        return L
    P.v_lshlrev_b32(v(20), 2, v(vTK)); P.s_lshl_b32(s(sT[0]), s(sTT), 7)
    if k2:
        P.s_lshl_b32(s(sT[1]), s(sWV), 10); P.s_add_u32("m0", s(sT[1]), AUXB); P.s_add_u32(s(sT[1]), s(sT[1]), WS_W2BAR)
        P.v_lshlrev_b32(v(21), 4, v(vL))
        P.buffer_load_dwordx4(v(21), s(sWS,4), s(sT[1]), m="offen lds")
        P.s_add_u32(s(sT[1]), s(sT[0]), WS_MEANX)
        P.buffer_load_dword(v(vS0), v(20), s(sWS,4), s(sT[1]), m="offen")
    else:
        P.s_add_u32(s(sT[1]), s(sT[0]), WS_GATE); P.buffer_load_dword(v(vS0), v(20), s(sWS,4), s(sT[1]), m="offen")
        P.s_add_u32(s(sT[1]), s(sT[0]), WS_MEAN1); P.buffer_load_dword(v(vS1), v(20), s(sWS,4), s(sT[1]), m="offen")
        P.s_lshl_b32(s(sT[5]), s(sCG), 12); P.s_add_u32(s(sT[5]), s(sT[5]), s(sAO))
    LEAD = o["LEAD"]
    for g in range(LEAD): P.extend(loads(g))
    P.v_bfe_u32(v(16), v(vL), 2, 2); P.v_lshl_add_u32(v(16), v(19), 2, v(16)); P.v_lshlrev_b32(v(16), 7, v(16))
    P.v_bfe_u32(v(17), v(vL), 4, 1); P.v_lshl_add_u32(v(16), v(17), 5, v(16))
    P.v_and_b32(v(17), 3, v(vL)); P.v_lshl_add_u32(v(16), v(17), 3, v(16))
    P.v_bfe_u32(v(17), v(vL), 3, 1); P.v_lshl_add_u32(v(vRA[0]), v(17), 6, v(16))
    P.v_xor_b32(v(vRA[1]), 64, v(vRA[0]))
    P.v_add_u32(v(vRA[2]), 65536, v(vRA[0])); P.v_add_u32(v(vRA[3]), 65536, v(vRA[1]))
    if k2:
        P.v_and_b32(v(17), 1, v(vL)); P.v_mul_u32_u24(v(17), 1152, v(17)); P.v_lshl_add_u32(v(vAA), v(19), 4, v(17)); P.v_add_u32(v(vAA), AUXB, v(vAA))
    else:
        P.v_bfe_u32(v(16), v(vL), 2, 1); P.v_cmp_eq_u32("vcc", v(16), v(19))
        P.v_and_b32(v(17), 1, v(vL)); P.v_lshlrev_b32(v(17), 4, v(17)); P.v_mov_b32(v(18), 0x3f80); P.v_lshlrev_b32(v(17), v(17), v(18))
        P.v_cndmask_b32(v(17), 0, v(17), "vcc")
        P.v_bfe_u32(v(16), v(vL), 1, 1); P.v_bfe_u32(v(18), v(vL), 3, 2); P.v_lshl_add_u32(v(16), v(18), 1, v(16))
        for i in range(8):
            P.v_cmp_eq_u32("vcc", i, v(16)); P.v_cndmask_b32(v(vAF+i), 0, v(17), "vcc")
    frc = 0
    for g in range(9):
        issued = min(9, g + LEAD)
        extra_after = 4 if (k2 and issued == 9 and g + LEAD > 9) else 0
        P.wait(vm=min(63, (issued - g - 1)*NPER + extra_after))
        P.s_barrier()
        ld = loads(g+LEAD) if g + LEAD < 9 else []
        if k2 and g + LEAD == 9:
            ld = [Ins("buffer_load_dwordx4", [v(vXR+4*i,4), v(vXO), s(sX,4), 0], f"offen offset:{32*i}") for i in range(4)]
        rd = []; mf = []
        for j in range(4):
            st = 4*g + j
            first = st == 0
            for nt in range(2):
                fr = vF + 4*(frc % NF); frc += 1
                ar = vRA[nt + (2 if st >= 32 else 0)]; off = (st % 32)*2048
                rd.append([Ins("ds_read_b64_tr_b16", [v(fr,2), v(ar)], f"offset:{off}"), Ins("ds_read_b64_tr_b16", [v(fr+2,2), v(ar)], f"offset:{off+1024}")])
                mf.append(Ins(MF, [v(vACC[nt],16), v(fr,4), ACT(st), 0 if first else v(vACC[nt],16)]))
            if k2:
                fr = vAF + 4*j
                rd.append([Ins("ds_read_b128", [v(fr,4), v(vAA)], f"offset:{st*32}")])
                mf.append(Ins(MF, [v(vAC2[0],16), v(fr,4), ACT(st), 0 if first else v(vAC2[0],16)]))
            else:
                rd.append([])
                d = v(vAC2[j>>1],16)
                mf.append(Ins(MF, [d, v(vAF+4*(j&1),4), PF(4*g+j), 0 if (g == 0 and j % 2 == 0) else d]))
        PD = 6
        for i in range(PD): P.extend(rd[i])
        for i, m in enumerate(mf):
            P.add(m)
            if i + PD < len(rd): P.extend(rd[i+PD])
            for _ in range(2):
                if ld: P.add(ld.pop(0))
        P.extend(ld)
    if o["stamp"]: P.s_memtime(s(sST+2,2)); P.wait(lgkm=0)
    if k2:
        for i in range(4):
            r = vXR + 4*i
            P.v_permlane32_swap_b32(v(r), v(r+2)); P.v_permlane32_swap_b32(v(r+1), v(r+3))
        P.v_add_f32(v(vS0), v(vS0), v(vAC2[0])); P.v_add_f32(v(vS0), v(vS0), v(vAC2[0]+1))
        P.v_mov_b32(v(16), 0); P.v_mov_b32(v(17), 0)
        P.v_lshlrev_b32(v(21), 4, v(vL))
        P.s_mul_i32(s(sT[0]), s(sTT), 36864); P.s_lshl_b32(s(sT[1]), s(sCG), 12); P.s_add_u32(s(sT[0]), s(sT[0]), s(sT[1])); P.s_add_u32(s(sT[0]), s(sT[0]), WS_X1C)
        for nt in range(2):
            for q in range(2):
                for d in range(4):
                    x = vXR + 8*nt + 4*q + d; r = vACC[nt] + 8*q + 2*d
                    P.v_lshlrev_b32(v(18), 16, v(x)); P.v_and_b32(v(19), 0xffff0000, v(x))
                    P.v_sub_f32(v(r), v(r), v(vS0)); P.v_sub_f32(v(r+1), v(r+1), v(vS0))
                    P.v_add_f32(v(r), v(r), v(18)); P.v_add_f32(v(r+1), v(r+1), v(19))
                    P.v_fmac_f32(v(16), v(r), v(r)); P.v_fmac_f32(v(17), v(r+1), v(r+1))
                    P.v_cvt_pk_bf16_f32(v(x), v(r), v(r+1))
                P.buffer_store_dwordx4(v(vXR+8*nt+4*q,4), v(21), s(sWS,4), s(sT[0]), m=f"offen offset:{(2*nt+q)*1024}")
        P.v_add_f32(v(16), v(16), v(17)); P.v_mov_b32(v(17), v(16)); P.v_permlane32_swap_b32(v(16), v(17)); P.v_add_f32(v(16), v(16), v(17))
        P.s_lshl_b32(s(sT[0]), s(sTT), 7); P.s_lshl_b32(s(sT[1]), s(sCG), 13); P.s_add_u32(s(sT[1]), s(sT[1]), s(sT[0])); P.s_add_u32(s(sT[1]), s(sT[1]), WS_VARP)
        P.buffer_store_dword(v(16), v(20), s(sWS,4), s(sT[1]), m="offen")
        P.s_cmp_lg_u32(s(sCG), 0); P.s_cbranch_scc1(f"L_{nm}_done")
        P.s_add_u32(s(sT[0]), s(sT[0]), WS_MEAN1)
        P.buffer_store_dword(v(vS0), v(20), s(sWS,4), s(sT[0]), m="offen")
        P.label(f"L_{nm}_done")
    else:
        P.v_sub_f32(v(16), 1.0, v(vS0))
        P.v_mul_f32(v(17), v(16), v(vS1))
        for nt in range(2):
            for q in range(2):
                t = vXR + 8*nt + 4*q
                for d in range(4):
                    for e in range(2):
                        r = vACC[nt] + 8*q + 2*d + e; b = vAC2[nt] + 8*q + 2*d + e
                        P.v_fma_f32(v(b), v(b), v(16), v(17)); P.v_fmac_f32(v(b), v(r), v(vS0))
                    b = vAC2[nt] + 8*q + 2*d
                    P.v_cvt_pk_bf16_f32(v(t+d), v(b), v(b+1))
                P.v_permlane32_swap_b32(v(t), v(t+2)); P.v_permlane32_swap_b32(v(t+1), v(t+3))
                P.buffer_store_dwordx4(v(t,4), v(vXO), s(sX,4), 0, m=f"offen offset:{64*nt + 32*q}")
    if o["stamp"]:
        P.wait(vm=0)
        P.s_memtime(s(sST+4,2)); P.wait(lgkm=0)
        P.s_sub_u32(s(sST+2), s(sST+2), s(sST)); P.s_sub_u32(s(sST+4), s(sST+4), s(sST))
        P.s_add_u32(s(sWS), s(sPtr+2), WS_TS + (kind << 16)); P.s_addc_u32(s(sWS+1), s(sPtr+3), 0); P.s_mov_b32(s(sWS+2), 1<<16)
        P.s_lshl_b32(s(sT[1]), "s2", 2); P.s_add_u32(s(sT[1]), s(sT[1]), s(sWV)); P.s_lshl_b32(s(sT[1]), s(sT[1]), 4)
        P.v_mov_b32(v(24), s(sST+2)); P.v_mov_b32(v(25), s(sST+4)); P.v_mov_b32(v(26), 0); P.v_mov_b32(v(27), 0); P.v_mov_b32(v(22), 0)
        P.buffer_store_dwordx4(v(24,4), v(22), s(sWS,4), s(sT[1]), m="offen")
    P.s_endpgm()
    if k2:
        P.label(f"L_{nm}_pf")
        P.s_load_dwordx4(s(40,4), "s[0:1]", KA_W3)
        P.s_load_dwordx2(s(44,2), "s[0:1]", KA_WO)
        P.s_sub_u32(s(sT[0]), "s2", ngemm)
        P.s_lshl_b32(s(sT[1]), s(sT[0]), 16)
        P.s_lshl_b32(s(sT[2]), s(sT[0]), 15)
        P.v_lshlrev_b32(v(1), 7, "v0")
        P.s_mov_b32(s(8), s(40)); P.s_mov_b32(s(9), s(41)); P.s_mov_b32(s(10), D*F*2); P.s_mov_b32(s(11), 0x20000)
        P.s_mov_b32(s(12), s(42)); P.s_mov_b32(s(13), s(43)); P.s_mov_b32(s(14), D*F*2); P.s_mov_b32(s(15), 0x20000)
        P.s_mov_b32(s(16), s(44)); P.s_mov_b32(s(17), s(45)); P.s_mov_b32(s(18), D*D*2); P.s_mov_b32(s(19), 0x20000)
        P.s_add_u32(s(sT[3]), s(sT[1]), 32768)
        P.buffer_load_dword(v(2), v(1), s(8,4), s(sT[1]), m="offen")
        P.buffer_load_dword(v(3), v(1), s(12,4), s(sT[1]), m="offen")
        P.buffer_load_dword(v(4), v(1), s(8,4), s(sT[3]), m="offen")
        P.buffer_load_dword(v(5), v(1), s(12,4), s(sT[3]), m="offen")
        P.buffer_load_dword(v(6), v(1), s(16,4), s(sT[2]), m="offen")
        P.wait(vm=0)
    P.label(f"L_{nm}_exit")
    P.s_endpgm()
    return P

def text(kind, opts=None, verbose=False):
    return kernel_text(f"k{kind}_kernel", gen(kind, opts).finalize(verbose=verbose), 512, 256)
def launch(kind): return f"; @launch kernel=k{kind}_kernel grid=({256 if kind == 2 else 144},1,1) block=(256,1,1) lds={K24_LDS}\n"
if __name__ == "__main__":
    for kind in (2, 4):
        open(f"k{kind}_test.s", "w").write(launch(kind) + ".amdgcn_target \"amdgcn-amd-amdhsa--gfx950\"\n" + text(kind, dict(stamp=True), True))
```

```python
S, D, H, DH, F = 2048, 576, 32, 18, 4608
KA_X, KA_WQKV, KA_WO, KA_BX, KA_W1, KA_W2, KA_W3, KA_W4, KA_GW, KA_OUT, KA_DBG, KA_WS = [8*i for i in range(12)]
WS_QM   = 0x000000
WS_QE   = 0x200000
WS_KV   = 0x2400000
KVREC   = 2368
KVHEAD  = 64*KVREC
WS_H    = 0x6C0000
WS_X1C  = 0x900000
WS_O    = 0xB40000
WS_MEANX= 0xD80000
WS_GATE = 0xD82000
WS_MEAN1= 0xD84000
WS_W2BAR= 0xD86000
WS_VARP = 0xD88000
WS_PART = 0xE00000
ACT_BYTES = S*D*2
WS_TS   = 0x2000000
```

```python
from asmb import *
from layout import *
import math

LOG2E = 1.4426950408889634
def f2u(x):
    import struct
    return struct.unpack("<I", struct.pack("<f", x))[0]

NCG2 = 9

def gen_mlp(P, s_rt, s_sp, sb=40, opts=None):
    o = dict(pk=False, dma=True, gelu=True, PD=6, stamp=False, waitpair=True)
    o.update(opts or {})
    sW3, sW4, sWS = sb, sb+4, sb+8
    sPT = sb+12
    sSO3, sSO4 = sb+16, sb+25
    sM0 = sb+34
    sWV, sT0, sT1, sCNT = sb+35, sb+36, sb+37, sb+38
    sPtr = sb+40
    vRA = [1, 2]
    vO3, vO4 = 3, 4
    vC1, vC2, vIR = 6, 8, 10
    vT = [12, 13, 14, 15]
    vLP = 5
    vF = 16; NF = 8
    vH = [48, 64]
    def outreg(nt):
        return a(144 + 16*nt, 16) if nt < 7 else v(80 + 16*(nt-7), 16)
    X = lambda st: a(4*st, 4)
    SLOT = 36864

    P.s_load_dwordx2(s(sPtr,2), "s[0:1]", KA_W3)
    P.s_load_dwordx2(s(sPtr+2,2), "s[0:1]", KA_W4)
    P.s_load_dwordx2(s(sPtr+4,2), "s[0:1]", KA_WS)
    P.v_lshrrev_b32(v(7), 6, "v0")
    P.v_and_b32(v(9), 63, "v0")
    P.v_readfirstlane_b32(s(sWV), v(7))
    P.v_lshrrev_b32(v(11), 2, v(9))
    P.v_and_b32(v(12), 3, v(9))
    P.v_lshlrev_b32(v(12), 4, v(12))
    P.s_movk_i32(s(sT0), 9216)
    P.v_mad_u32_u24(v(vO3), v(11), s(sT0), v(12))
    P.s_movk_i32(s(sT0), 1152)
    P.v_mad_u32_u24(v(vO4), v(11), s(sT0), v(12))
    P.s_mul_i32(s(sT0), s_sp, 1152)
    P.v_add_u32(v(vO3), s(sT0), v(vO3))
    P.s_mul_i32(s(sT0), s_sp, 576*1152)
    P.v_add_u32(v(vO4), s(sT0), v(vO4))
    P.v_lshrrev_b32(v(11), 5, v(9)); P.v_lshlrev_b32(v(vLP), 8, v(11))
    P.v_bfe_u32(v(11), v(9), 2, 2);  P.v_lshl_add_u32(v(vLP), v(11), 6, v(vLP))
    P.v_bfe_u32(v(11), v(9), 4, 1);  P.v_lshl_add_u32(v(vLP), v(11), 5, v(vLP))
    P.v_and_b32(v(11), 3, v(9));     P.v_lshl_add_u32(v(vLP), v(11), 3, v(vLP))
    P.s_mul_i32(s(sT1), s(sWV), 9)
    P.s_lshl_b32(s(sM0), s(sT1), 10)
    for i in range(9):
        imm = (i % 4) * 1024
        P.s_add_u32(s(sT0), s(sT1), i)
        P.s_mul_i32(s(sSO3+i), s(sT0), 16*9216)
        P.s_add_u32(s(sSO3+i), s(sSO3+i), 4096 - imm)
        P.s_and_b32(s(sSO4+i), s(sT0), 1)
        P.s_mul_i32(s(sSO4+i), s(sSO4+i), 16*1152)
        P.s_lshr_b32(s(sT0), s(sT0), 1)
        P.s_lshl_b32(s(sT0), s(sT0), 6)
        P.s_add_u32(s(sSO4+i), s(sSO4+i), s(sT0))
        P.s_add_u32(s(sSO4+i), s(sSO4+i), 4096 - imm)
    P.s_sub_u32(s(sW3), s(sPtr), 4096); P.s_subb_u32(s(sW3+1), s(sPtr+1), 0)
    P.s_mov_b32(s(sW3+2), D*F*2 + 4096); P.s_mov_b32(s(sW3+3), 0x20000)
    P.s_sub_u32(s(sW4), s(sPtr+2), 4096); P.s_subb_u32(s(sW4+1), s(sPtr+3), 0)
    P.s_mov_b32(s(sW4+2), D*F*2 + 4096); P.s_mov_b32(s(sW4+3), 0x20000)
    P.s_mov_b32(s(sWS), s(sPtr+4)); P.s_mov_b32(s(sWS+1), s(sPtr+5))
    P.s_mov_b32(s(sWS+2), WS_PART); P.s_mov_b32(s(sWS+3), 0x20000)
    P.s_lshl_b32(s(sT0), s_rt, 2); P.s_add_u32(s(sT0), s(sT0), s(sWV))
    P.s_mul_i32(s(sT0), s(sT0), 36864)
    P.s_mul_i32(s(sT1), s_sp, ACT_BYTES)
    P.s_add_u32(s(sT1), s(sT1), s(sT0)); P.s_add_u32(s(sT1), s(sT1), WS_PART)
    P.s_add_u32(s(sPT), s(sPtr+4), s(sT1)); P.s_addc_u32(s(sPT+1), s(sPtr+5), 0)
    P.s_mov_b32(s(sPT+2), 36864); P.s_mov_b32(s(sPT+3), 0x20000)

    def dma_items(kind, slot):
        items = []
        srd, so, vo = (sW3, sSO3, vO3) if kind == 1 else (sW4, sSO4, vO4)
        for i in range(9):
            g = []
            if i % 4 == 0:
                g.append(Ins("s_add_u32", ["m0", s(sM0), slot*SLOT + (i//4)*4096]))
            g.append(Ins("buffer_load_dwordx4", [v(vo), s(srd,4), s(so+i)], f"offen offset:{(i%4)*1024} lds"))
            items.append(g)
        items.append([Ins("v_add_u32", [v(vo), 64 if kind == 1 else 36864, v(vo)])])
        return items
    def emit_dma(kind, slot):
        for g in dma_items(kind, slot): P.extend(g)

    emit_dma(1, 0)
    P.v_lshlrev_b32(v(11), 4, v(9))
    P.s_add_u32(s(sT0), s(sT0), WS_X1C)
    for st in range(36):
        if st and st % 4 == 0: P.s_add_u32(s(sT0), s(sT0), 4096)
        P.buffer_load_dwordx4(X(st), v(11), s(sWS,4), s(sT0), m=f"offen offset:{(st%4)*1024}")
    P.v_and_b32(v(12), 31, v(9)); P.v_lshlrev_b32(v(12), 2, v(12))
    P.s_lshl_b32(s(sT0), s_rt, 2); P.s_add_u32(s(sT0), s(sT0), s(sWV)); P.s_lshl_b32(s(sT0), s(sT0), 7)
    P.s_add_u32(s(sT0), s(sT0), WS_VARP)
    for c in range(NCG2):
        P.buffer_load_dword(v(vF+c), v(12), s(sWS,4), s(sT0), m="offen")
        if c < NCG2-1: P.s_add_u32(s(sT0), s(sT0), 8192)
    emit_dma(1, 1)
    emit_dma(2, 2)
    for i in range(112): P.v_accvgpr_write_b32(a(144+i), 0)
    for i in range(176): P.v_mov_b32(v(80+i), 0)
    for c in range(1, NCG2): P.v_add_f32(v(vF), v(vF), v(vF+c))
    P.v_mov_b32(v(vF+1), f2u(1e-5))
    P.v_fmac_f32(v(vF+1), f2u(1.0/576), v(vF))
    P.v_sqrt_f32(v(vIR), v(vF+1))
    P.v_rsq_f32(v(vF+2), v(vF+1))
    k1 = -2*LOG2E*math.sqrt(2/math.pi)
    P.v_mul_f32(v(vC1), f2u(k1), v(vF+2))
    P.v_mul_f32(v(vF+3), v(vF+2), v(vF+2))
    P.v_mul_f32(v(vF+3), f2u(0.044715), v(vF+3))
    P.v_mul_f32(v(vC2), v(vC1), v(vF+3))
    P.v_mov_b32(v(vRA[0]), v(vLP))

    def gelu_stream(buf, pairs):
        out = []
        Hb = vH[buf]
        for n, j in enumerate(pairs):
            a0, a1 = Hb + 2*j, Hb + 2*j + 1
            t0 = vT[2*(n % 2)]; t1 = t0 + 1
            if o["pk"]:
                bc = "op_sel_hi:[1,0,0]"
                out += [(Ins("v_pk_mul_f32", [v(t0,2), v(a0,2), v(a0,2)]), 4),
                        (Ins("v_pk_fma_f32", [v(t0,2), v(t0,2), v(vC2,2), v(vC1,2)], bc), 4),
                        (Ins("v_pk_mul_f32", [v(t0,2), v(t0,2), v(a0,2)]), 4),
                        (Ins("v_exp_f32", [v(t0), v(t0)]), 8), (Ins("v_exp_f32", [v(t1), v(t1)]), 8),
                        None,
                        (Ins("v_pk_fma_f32", [v(t0,2), v(t0,2), v(vIR,2), v(vIR,2)], bc), 4),
                        (Ins("v_rcp_f32", [v(t0), v(t0)]), 8), (Ins("v_rcp_f32", [v(t1), v(t1)]), 8),
                        None,
                        (Ins("v_pk_mul_f32", [v(t0,2), v(t0,2), v(a0,2)]), 4),
                        (Ins("v_cvt_pk_bf16_f32", [v(Hb+j), v(t0), v(t1)]), 4)]
            else:
                for (op, f, c) in [("v_mul_f32", lambda t, x: [v(t), v(x), v(x)], 4),
                                   ("v_fma_f32", lambda t, x: [v(t), v(t), v(vC2), v(vC1)], 4),
                                   ("v_mul_f32", lambda t, x: [v(t), v(t), v(x)], 4),
                                   ("v_exp_f32", lambda t, x: [v(t), v(t)], 8),
                                   ("v_fma_f32", lambda t, x: [v(t), v(t), v(vIR), v(vIR)], 4),
                                   ("v_rcp_f32", lambda t, x: [v(t), v(t)], 8),
                                   ("v_mul_f32", lambda t, x: [v(t), v(t), v(x)], 4)]:
                    out.append((Ins(op, f(t0, a0)), c)); out.append((Ins(op, f(t1, a1)), c))
                out.append((Ins("v_cvt_pk_bf16_f32", [v(Hb+j), v(t0), v(t1)]), 4))
        return [x for x in out if x is not None] if o["gelu"] else []

    def block(kind, buf, slot, gel, dma):
        return dict(kind=kind, buf=buf, slot=slot, gel=gel, dma=dma)
    def mfmas(B):
        L = []
        for m in range(36):
            if B["kind"] == 1:
                L.append((v(vH[B["buf"]],16), X(m), m == 0, m*1024))
            else:
                j, nt = divmod(m, 18)
                L.append((outreg(nt), v(vH[B["buf"]]+4*j, 4), False, nt*2048 + j*1024))
        return L

    PD = o["PD"]
    state = dict(fr=0)
    def reads(B, bi, m, gidx):
        fr = vF + 4*(gidx % NF)
        off = mfmas(B)[m][3]
        return [Ins("ds_read_b64_tr_b16", [v(fr,2), v(vRA[bi % 2])], f"offset:{off}"),
                Ins("ds_read_b64_tr_b16", [v(fr+2,2), v(vRA[bi % 2])], f"offset:{off+512}")]

    def emit_block(B, bi, Bn, vm_at_barrier):
        g0 = bi*36
        ML = mfmas(B)
        gel = list(B["gel"]); dma = list(B["dma"]) if o["dma"] else []
        total_gel = sum(c for _, c in gel)
        done_gel = 0
        nxt_read = PD
        bar_gap = 36 - PD + 1
        first_gel_gap = 2
        last_gel_gap = 34
        dma_gaps = [3 + 3*i for i in range(10)]
        for m in range(36):
            dst, b, zero, off = ML[m]
            fr = vF + 4*((g0+m) % NF)
            if o["waitpair"] and m % 2 == 0:
                n = 2*(nxt_read - (m+2))
                P.wait(lgkm=max(0, min(15, n)))
            P.add(Ins("v_mfma_f32_32x32x16_bf16", [dst, v(fr,4), b, 0 if zero else dst]))
            budget = 24 - (4 if (o["waitpair"] and m % 2 == 1) else 0)
            if m == bar_gap and Bn is not None:
                P.wait(vm=vm_at_barrier, lgkm=0)
                P.s_barrier()
                P.v_add_u32(v(vRA[(bi+1) % 2]), Bn["slot"]*SLOT, v(vLP))
                budget -= 12
            cnt = 0
            while nxt_read <= m + PD and cnt < 2 and (nxt_read - m) < NF:
                if nxt_read >= 36:
                    if Bn is None or m < bar_gap: break
                    P.extend(reads(Bn, bi+1, nxt_read-36, g0+nxt_read))
                else:
                    P.extend(reads(B, bi, nxt_read, g0+nxt_read))
                nxt_read += 1; cnt += 1; budget -= 8
            if dma and m in dma_gaps:
                g = dma.pop(0); P.extend(g); budget -= 4*len(g)
            if first_gel_gap <= m:
                target = total_gel * (m - first_gel_gap + 1) / (last_gel_gap - first_gel_gap + 1)
                while gel and (done_gel < target) and (budget >= gel[0][1] or done_gel + 8 < target or m >= last_gel_gap):
                    i, c = gel.pop(0); P.add(i); done_gel += c; budget -= c
        assert not gel and not dma, (len(gel), len(dma))
        if Bn is not None: assert nxt_read == 36 + PD, nxt_read

    allp = list(range(8)); h0 = [0,1,2,3]; h1 = [4,5,6,7]
    B0 = block(1, 0, 0, [], dma_items(1, 3))
    B1 = block(1, 1, 1, gelu_stream(0, allp), dma_items(2, 0))
    L = [block(2, 0, 2, gelu_stream(1, h0), dma_items(1, 1)),
         block(1, 0, 3, gelu_stream(1, h1), dma_items(2, 2)),
         block(2, 1, 0, gelu_stream(0, h0), dma_items(1, 3)),
         block(1, 1, 1, gelu_stream(0, h1), dma_items(2, 0))]
    E0 = block(2, 0, 2, gelu_stream(1, allp), [])
    E1 = block(2, 1, 0, [], [])

    P.wait(vm=18)
    P.s_barrier()
    if o["stamp"]: P.s_memtime(s(sPtr,2)); P.wait(lgkm=0)
    for m in range(PD): P.extend(reads(B0, 0, m, m))
    emit_block(B0, 0, B1, 18)
    emit_block(B1, 1, L[0], 18)
    P.s_mov_b32(s(sCNT), 8)
    P.raw(".p2align 3")
    P.loop_begin("L_mlp_loop")
    for q in range(4):
        emit_block(L[q], 2+q, L[(q+1) % 4], 18)
    P.s_sub_u32(s(sCNT), s(sCNT), 1)
    P.s_cmp_lg_u32(s(sCNT), 0)
    P.s_cbranch_scc1("L_mlp_loop")
    P.loop_end()
    emit_block(E0, 6, E1, 0)
    emit_block(E1, 7, None, 0)
    if o["stamp"]:
        P.s_memtime(s(sPtr+2,2))
    P.v_and_b32(v(1), 63, "v0"); P.v_lshlrev_b32(v(1), 4, v(1))
    P.s_mov_b32(s(sT0), 0)
    order = list(range(7, 18)) + list(range(7))
    k = 0
    for nt in order:
        for q in range(2):
            t = vF + 4*(k % 8); k += 1
            if nt < 7:
                src = 48 + 8*(k % 4)
                for i in range(8): P.v_accvgpr_read_b32(v(src+i), a(144+16*nt+8*q+i))
            else:
                src = 80 + 16*(nt-7) + 8*q
            for i in range(4): P.v_cvt_pk_bf16_f32(v(t+i), v(src+2*i), v(src+2*i+1))
            off = (2*nt+q)*1024
            P.s_movk_i32(s(sT0), off & ~4095) if (off & ~4095) < 32768 else P.s_mov_b32(s(sT0), off & ~4095)
            P.buffer_store_dwordx4(v(t,4), v(1), s(sPT,4), s(sT0), m=f"offen offset:{off & 4095}")
    if o["stamp"]:
        P.wait(vm=0)
        P.s_memtime(s(sT0,2))
        P.s_load_dwordx2(s(sPtr+4,2), "s[0:1]", KA_WS)
        P.wait(lgkm=0)
        P.s_sub_u32(s(sPtr+2), s(sPtr+2), s(sPtr))
        P.s_sub_u32(s(sT0), s(sT0), s(sPtr))
        P.s_add_u32(s(sWS), s(sPtr+4), WS_TS); P.s_addc_u32(s(sWS+1), s(sPtr+5), 0)
        P.s_mov_b32(s(sWS+2), 1<<16)
        P.s_lshl_b32(s(sT1), "s2", 2); P.s_add_u32(s(sT1), s(sT1), s(sWV)); P.s_lshl_b32(s(sT1), s(sT1), 4)
        P.v_mov_b32(v(2), s(sPtr+2)); P.v_mov_b32(v(3), s(sT0)); P.v_mov_b32(v(4), s(sPtr)); P.v_mov_b32(v(5), 0)
        P.v_mov_b32(v(6), 0)
        P.buffer_store_dwordx4(v(2,4), v(6), s(sWS,4), s(sT1), m="offen")
    P.s_endpgm()

def standalone(opts=None):
    P = Prog()
    P.s_cmp_ge_u32("s2", 128); P.s_cbranch_scc1("L_mlp_exit")
    P.s_and_b32("s4", "s2", 7)
    P.s_lshr_b32("s5", "s2", 3)
    gen_mlp(P, "s5", "s4", sb=8, opts=opts)
    P.label("L_mlp_exit"); P.s_endpgm()
    body = P.finalize(verbose=True)
    return "; @launch kernel=mlp_kernel grid=(128,1,1) block=(256,1,1) lds=147456\n.amdgcn_target \"amdgcn-amd-amdhsa--gfx950\"\n" + kernel_text("mlp_kernel", body, 512, 256)

if __name__ == "__main__":
    open("mlp_test.s", "w").write(standalone(dict(stamp=True)))
```

```python
import sys
from asmb import *
from layout import *
import k1, k24, mlp, attn

def k3_text(opts=None, verbose=False):
    P = Prog()
    P.s_cmp_ge_u32("s2", 256); P.s_cbranch_scc1("L_k3_exit")
    P.s_and_b32("s4", "s2", 7); P.s_lshr_b32("s5", "s2", 4)
    P.s_bitcmp1_b32("s2", 3); P.s_cbranch_scc1("L_k3_attn")
    mlp.gen_mlp(P, "s5", "s4", sb=8, opts=opts)
    P.label("L_k3_attn")
    P.s_lshl_b32("s4", "s4", 2); P.s_and_b32("s6", "s5", 3); P.s_add_u32("s4", "s4", "s6"); P.s_lshr_b32("s5", "s5", 2)
    attn.gen_attn(P, "s4", "s5", sb=8, opts=opts)
    P.label("L_k3_exit"); P.s_endpgm()
    return kernel_text("k3_kernel", P.finalize(verbose=verbose), 512, 256)

HEADER = open("gated_mix__mha_block__mixer_s_mlp__prompt.s.ref").read().split("; Override launch")[0]
def full(opts=None):
    t = HEADER
    t += k1.LAUNCH + k24.launch(2) + "; @launch kernel=k3_kernel grid=(256,1,1) block=(256,1,1) lds=163840\n" + k24.launch(4)
    t += ".amdgcn_target \"amdgcn-amd-amdhsa--gfx950\"\n"
    t += k1.text(opts) + k24.text(2, opts) + k3_text(opts) + k24.text(4, opts)
    return t
if __name__ == "__main__":
    open("gated_mix__mha_block__mixer_s_mlp__prompt.s", "w").write(full())
```
